```python
import torch

def _softmax(x, axis=-1):
    return torch.softmax(x, dim=axis)
def _gelu(x):
    return torch.nn.functional.gelu(x, approximate="tanh")
def _silu(x):
    return torch.nn.functional.silu(x)
def _sigmoid(x):
    return torch.sigmoid(x)
def _layernorm(x, axis=-1, eps=1e-5):
    m = x.mean(dim=axis, keepdim=True)
    v = x.var(dim=axis, keepdim=True, unbiased=False)
    return (x - m) / torch.sqrt(v + eps)
def _scatter_add(tgt, idx, src, axis=0):
    return tgt.clone().index_add_(axis, idx, src)
def _segment_sum(src, seg, n):
    out = torch.zeros((n,) + src.shape[1:], dtype=src.dtype)
    return out.index_add_(0, seg, src)
def _pad(x, pw):
    flat = tuple(v for pair in reversed(pw) for v in pair)
    return torch.nn.functional.pad(x, flat)

kernel_name = 'standalone__grouped_kv_mqa__prompt'

def setup_inputs():

    _w = (lambda a: (lambda t: t.to(torch.bfloat16) if t.is_floating_point() else t)(torch.as_tensor(a)))
    B, S, D, H = 1, 2048, 576, 32
    Dh = D // H
    return {
        "x": _w((lambda *s: torch.randn(*s, dtype=torch.bfloat16) * 0.05)(B, S, D)),
        "wq": _w((lambda *s: torch.randn(*s, dtype=torch.bfloat16) * 0.8)(D, H * Dh)),
        "wk": _w((lambda *s: torch.randn(*s, dtype=torch.bfloat16) * 0.8)(D, Dh)),
        "wv": _w((lambda *s: torch.randn(*s, dtype=torch.bfloat16) * 0.05)(D, Dh)),
        "wo": _w((lambda *s: torch.randn(*s, dtype=torch.bfloat16) * 0.05)(H * Dh, D)),
    }

def reference(x, wq, wk, wv, wo):
    B, S, D = x.shape
    H = 32
    Dh = D // H
    q = (lambda x, *d: x.permute(*d))((x @ wq).reshape(B, S, H, Dh), 0, 2, 1, 3)
    k = x @ wk
    v = x @ wv
    scores = torch.einsum("bhqd,bkd->bhqk", q, k) * (Dh ** -0.5)
    p = _softmax(scores, axis=-1)
    o = torch.einsum("bhqk,bkd->bhqd", p, v)
    return (lambda x, *d: x.permute(*d))(o, 0, 2, 1, 3).reshape(B, S, H * Dh) @ wo
```

```python
import sys, math, struct

NAME = "standalone__grouped_kv_mqa__prompt"
WIMG = 0
WKV  = 62208
XIMG = 85248
BLK  = 18432
KVSZ = 8 * BLK
LDS_TOTAL = 163840
WS_KV = 0
WS_FLAG = 0x30000
WS_OFLAG = 0x34000
WS_EPOCH = 0x38000
WS_O = 0x40000
WS_SIZE = WS_O + 2048 * 1152
sW, sRB, sG, sHH, sTH = "s3", "s4", "s5", "s6", "s7"
SX, SWQ, SWKV, SWO, SOUT, SWS = "s[8:11]", "s[12:15]", "s[16:19]", "s[20:23]", "s[24:27]", "s[28:31]"
QSCALE = struct.unpack("<I", struct.pack("<f", math.log2(math.e) / math.sqrt(18.0)))[0]

class Asm:
    def __init__(s): s.l = []
    def __call__(s, t):
        for x in t.strip("\n").split("\n"):
            x = x.strip()
            if not x: continue
            s.l.append(x if x.endswith(":") else "    " + x)
    def text(s): return "\n".join(s.l) + "\n"

def vr(a, n): return f"v[{a}:{a+n-1}]"

def srd(a, base, lo, nbytes):
    a(f"""s_mov_b32 s{base}, s{lo}
    s_and_b32 s{base+1}, s{lo+1}, 0xffff
    s_mov_b32 s{base+2}, {nbytes}
    s_mov_b32 s{base+3}, 0x20000""")

vLANE, vXSRC, vWSRC, vKVSRC, vL16 = 1, 2, 3, 4, 5
vXA = 6
vWA = 10

def prologue(a, tag):
    a(f"""s_cmp_ge_u32 s2, 256
    s_cbranch_scc1 L_end_{tag}
    s_load_dwordx16 s[36:51], s[0:1], 0
    v_lshrrev_b32 v12, 6, v0
    v_and_b32 v{vLANE}, 63, v0
    v_readfirstlane_b32 {sW}, v12
    s_and_b32 {sRB}, s2, 7
    s_lshl_b32 {sRB}, {sRB}, 2
    s_lshr_b32 {sG}, s2, 6
    s_add_u32 {sRB}, {sRB}, {sG}
    s_bfe_u32 {sG}, s2, 0x30003
    s_and_b32 {sHH}, {sW}, 3
    s_lshr_b32 {sTH}, {sW}, 2
    v_lshlrev_b32 v{vL16}, 4, v{vLANE}
    s_lshl_b32 s34, {sHH}, 2
    v_lshrrev_b32 v12, 4, v{vLANE}
    v_add_u32 v12, s34, v12
    v_xor_b32 v12, v12, v{vLANE}
    v_and_b32 v12, 7, v12
    v_lshrrev_b32 v13, 3, v{vLANE}
    v_mul_u32_u24 v13, 1152, v13
    v_lshl_add_u32 v{vXSRC}, v12, 4, v13
    v_mul_u32_u24 v12, 57, v{vLANE}
    v_lshrrev_b32 v12, 9, v12
    v_mul_u32_u24 v12, 1008, v12
    v_add_u32 v{vWSRC}, v12, v{vL16}
    v_mul_u32_u24 v12, 205, v{vLANE}
    v_lshrrev_b32 v12, 11, v12
    v_sub_u32 v12, v{vLANE}, v12
    v_lshlrev_b32 v{vKVSRC}, 2, v12
    s_waitcnt lgkmcnt(0)""")
    srd(a, 8, 36, 2048 * 1152)
    srd(a, 12, 38, 576 * 1152)
    a(f"""s_bitcmp1_b32 {sG}, 0
    s_cselect_b32 s16, s42, s40
    s_cselect_b32 s17, s43, s41
    s_and_b32 s17, s17, 0xffff
    s_mov_b32 s18, {576*36}
    s_mov_b32 s19, 0x20000""")
    srd(a, 20, 44, 576 * 1152)
    srd(a, 24, 46, 2048 * 1152)
    srd(a, 28, 50, WS_SIZE)

def proj_addrs(a):
    a(f"""s_mul_i32 s34, {sTH}, 36864
    s_add_u32 s34, s34, {XIMG}
    v_and_b32 v12, 31, v{vLANE}
    v_lshrrev_b32 v13, 1, v12
    v_lshrrev_b32 v14, 5, v{vLANE}
    v_xor_b32 v13, v13, v14
    v_and_b32 v13, 7, v13
    v_lshlrev_b32 v13, 4, v13
    v_lshl_add_u32 v13, v12, 7, v13
    v_add_u32 v{vXA}, s34, v13
    v_xor_b32 v{vXA+1}, 32, v{vXA}
    v_xor_b32 v{vXA+2}, 64, v{vXA}
    v_xor_b32 v{vXA+3}, 0x60, v{vXA}""")
    a(f"""s_and_b32 s35, {sHH}, 1
    s_mul_i32 s34, {sHH}, 18
    s_sub_u32 s34, s34, s35
    s_sub_u32 s34, s34, s35
    s_lshl_b32 s34, s34, 1
    s_add_u32 s34, s34, {WIMG}
    s_add_u32 s35, s35, 2
    v_bfe_u32 v12, v{vLANE}, 4, 1
    v_bfe_u32 v13, v{vLANE}, 1, 1
    v_lshl_add_u32 v12, v12, 1, v13
    v_and_b32 v13, 1, v{vLANE}
    v_lshlrev_b32 v13, 4, v13
    v_lshl_add_u32 v13, v12, 3, v13
    v_cmp_le_u32 vcc, s35, v12
    v_bfe_u32 v14, v{vLANE}, 2, 2
    v_lshrrev_b32 v15, 5, v{vLANE}
    v_cndmask_b32 v13, v13, 32, vcc
    v_lshl_add_u32 v14, v15, 3, v14
    v_mul_u32_u24 v14, 144, v14
    v_add3_u32 v{vWA}, v13, v14, s34
    v_add_u32 v{vWA+1}, {18*2304}, v{vWA}""")

MASK54 = (1 << 54) - 1
MASKKV = sum(0x1FF << (10 * r) for r in range(6))
def set_exec(a, m):
    a(f"s_mov_b32 exec_lo, 0x{m & 0xffffffff:x}\ns_mov_b32 exec_hi, 0x{m >> 32:x}")

def issue_x(a):
    a(f"""s_mul_i32 s34, {sRB}, 73728
    s_mul_i32 s35, {sW}, 9216
    s_add_u32 s34, s34, s35
    s_mul_i32 s35, {sTH}, 36864
    s_lshl_b32 s33, {sHH}, 10
    s_add_u32 s35, s35, s33
    s_add_u32 m0, s35, {XIMG}
    s_nop 0""")
    for c in range(9):
        a(f"buffer_load_dwordx4 v{vXSRC}, {SX}, s34 offen lds")
        if c < 8: a("s_add_u32 m0, m0, 4096\ns_add_u32 s34, s34, 128")

def issue_wkv(a, n):
    a(f"""s_mul_i32 s34, s52, 216
    s_mul_i32 s35, s52, 240
    s_add_u32 m0, s35, {WKV}""")
    set_exec(a, MASKKV)
    for i in range(n):
        a(f"buffer_load_dword v{vKVSRC}, {SWKV}, s34 offen lds")
        if i < n - 1: a("s_add_u32 m0, m0, 240\ns_add_u32 s34, s34, 216")
    a("s_mov_b64 exec, -1")

vWST = 200
def issue_wq(a):
    a(f"""s_sub_u32 s33, {sW}, 2
    s_mul_i32 s34, s33, {6*1152}
    s_mul_i32 s35, {sG}, 144
    s_add_u32 s34, s34, s35
    s_mul_i32 s35, s33, {6*144}
    s_add_u32 m0, s35, {WIMG}""")
    set_exec(a, MASK54)
    for i in range(12):
        a(f"buffer_load_dwordx4 v{vWSRC}, {SWQ}, s34 offen lds")
        a(f"s_add_u32 m0, m0, {36*144}\ns_add_u32 s34, s34, {36*1152}")
    for i in range(4):
        a(f"buffer_load_dwordx4 {vr(vWST+4*i,4)}, v{vWSRC}, {SWQ}, s34 offen")
        if i < 3: a(f"s_add_u32 s34, s34, {36*1152}")
    a("s_mov_b64 exec, -1")

def write_wq_tail(a):
    a(f"""s_sub_u32 s33, {sW}, 2
    s_mul_i32 s35, s33, {6*144}
    s_add_u32 s35, s35, {WIMG + 432*144}
    v_add_u32 v12, s35, v{vL16}""")
    set_exec(a, MASK54)
    for i in range(4):
        a(f"ds_write_b128 v12, {vr(vWST+4*i,4)} offset:{i*36*144}")
    a("s_mov_b64 exec, -1")

vD = 16
vPA = 32
def proj_reads(a, s):
    b = vPA + 8 * (s % 3)
    wa, off = (vWA, s * 2304) if s < 18 else (vWA + 1, (s - 18) * 2304)
    a(f"""ds_read_b64_tr_b16 {vr(b,2)}, v{wa} offset:{off}
    ds_read_b64_tr_b16 {vr(b+2,2)}, v{wa} offset:{off+576}
    ds_read_b128 {vr(b+4,4)}, v{vXA+(s&3)} offset:{(s>>2)*4096}""")
def proj_stage(a, s0, s1):
    for s in range(s0, min(s0 + 3, s1)): proj_reads(a, s)
    for s in range(s0, s1):
        left = min(s1 - 1 - s, 2)
        a(f"s_waitcnt lgkmcnt({3*left})")
        b = vPA + 8 * (s % 3)
        c = "0" if s == 0 else vr(vD, 16)
        a(f"v_mfma_f32_32x32x16_bf16 {vr(vD,16)}, {vr(b,4)}, {vr(b+4,4)}, {c}")
        if s + 3 < s1: proj_reads(a, s + 3)

def kv_proj(a, tag, st_flags):
    a(f"""s_lshr_b32 s52, {sG}, 1
    s_lshr_b32 s53, s52, 1
    s_mul_i32 s34, s53, 36864
    s_add_u32 s34, s34, {XIMG}
    s_and_b32 s54, s52, 1
    s_lshl_b32 s35, s54, 4
    v_and_b32 v131, 15, v{vLANE}
    v_add_u32 v12, s35, v131
    v_lshrrev_b32 v13, 1, v12
    v_lshrrev_b32 v132, 4, v{vLANE}
    v_xor_b32 v13, v13, v132
    v_and_b32 v13, 7, v13
    v_lshlrev_b32 v13, 4, v13
    v_lshl_add_u32 v13, v12, 7, v13
    v_add_u32 v128, s34, v13
    v_xor_b32 v129, 64, v128
    v_bfe_u32 v13, v{vLANE}, 2, 2
    v_lshl_add_u32 v13, v132, 3, v13
    v_mul_u32_u24 v13, 40, v13
    v_and_b32 v14, 3, v{vLANE}
    v_lshlrev_b32 v14, 3, v14
    s_cmp_eq_u32 {sW}, 0
    s_cselect_b32 s35, -1, 0
    s_cselect_b32 s34, 0, 32
    s_add_u32 s34, s34, {WKV}
    v_and_b32 v14, s35, v14
    v_add3_u32 v130, v13, v14, s34
    s_bitcmp1_b32 {sG}, 0
    s_cbranch_scc1 L_kvV_{tag}""")
    DEPTH = 4
    def reads(s):
        b = 136 + 8 * (s % DEPTH)
        a(f"""ds_read_b64_tr_b16 {vr(b,2)}, v130 offset:{s*1280}
        ds_read_b64_tr_b16 {vr(b+2,2)}, v130 offset:{s*1280+160}
        ds_read_b128 {vr(b+4,4)}, v{128+(s&1)} offset:{(s>>1)*4096}""")
    def chain(isV):
        for s in range(DEPTH): reads(s)
        for s in range(18):
            left = min(17 - s, DEPTH - 1)
            a(f"s_waitcnt lgkmcnt({3*left})")
            b = 136 + 8 * (s % DEPTH)
            w_, x_ = vr(b, 4), vr(b + 4, 4)
            c = "0" if s == 0 else vr(168, 4)
            A_, B_ = (x_, w_) if isV else (w_, x_)
            a(f"v_mfma_f32_16x16x32_bf16 {vr(168,4)}, {A_}, {B_}, {c}")
            if s + DEPTH < 18: reads(s + DEPTH)
    common = f"""s_lshr_b32 s55, {sRB}, 2
    s_mul_i32 s55, s55, {BLK}
    s_and_b32 s56, {sRB}, 3
    s_lshl_b32 s56, s56, 1
    s_add_u32 s56, s56, s53"""
    chain(False)
    a(common)
    a(f"""s_lshl_b32 s35, s54, 4
    v_add_u32 v12, s35, v131
    s_cmp_lg_u32 {sW}, 0
    s_cbranch_scc1 L_kvKhi_{tag}
    s_lshl_b32 s34, s56, 10
    s_add_u32 s55, s55, s34
    v_lshrrev_b32 v13, 1, v132
    v_lshl_add_u32 v12, v13, 5, v12
    v_lshlrev_b32 v12, 4, v12
    v_and_b32 v13, 1, v132
    v_lshl_add_u32 v12, v13, 3, v12
    v_cvt_pk_bf16_f32 v172, v168, v169
    v_cvt_pk_bf16_f32 v173, v170, v171
    buffer_store_dwordx2 v[172:173], v12, {SWS}, s55 offen {st_flags}
    s_branch L_kvdone_{tag}
L_kvKhi_{tag}:
    s_and_b32 s34, s56, 1
    s_lshl_b32 s34, s34, 9
    s_lshr_b32 s35, s56, 1
    s_lshl_b32 s35, s35, 2
    s_add_u32 s34, s34, s35
    s_add_u32 s55, s55, s34
    s_add_u32 s55, s55, 8192
    v_lshlrev_b32 v12, 4, v12
    v_cvt_pk_bf16_f32 v172, v168, v169
    s_mov_b64 exec, 0xffff
    buffer_store_dword v172, v12, {SWS}, s55 offen {st_flags}
    s_mov_b64 exec, -1
    s_branch L_kvdone_{tag}
L_kvV_{tag}:""")
    chain(True)
    a(common)
    a(f"""; V : 9216 + tau*1152 + f*576 + (G&1)*288 + arow*16 + (G>>1)*8
    s_mul_i32 s34, s56, 1152
    s_mul_i32 s35, s54, 576
    s_add_u32 s55, s55, s34
    s_add_u32 s55, s55, s35
    s_add_u32 s55, s55, 9216
    v_and_b32 v12, 3, v131
    v_and_b32 v13, 4, v131
    v_lshl_add_u32 v12, v13, 1, v12
    v_bfe_u32 v13, v131, 3, 1
    v_lshl_add_u32 v12, v13, 2, v12
    s_cmp_eq_u32 {sW}, 0
    s_cselect_b32 s34, 0, 16
    s_cselect_b32 s32, -1, 0x00030003
    s_cselect_b32 s33, -1, 0x00030003
    v_add_u32 v12, s34, v12
    v_lshlrev_b32 v12, 4, v12
    v_and_b32 v13, 1, v132
    v_mul_u32_u24 v13, 288, v13
    v_add_u32 v12, v12, v13
    v_lshrrev_b32 v13, 1, v132
    v_lshl_add_u32 v12, v13, 3, v12
    v_cvt_pk_bf16_f32 v172, v168, v169
    v_cvt_pk_bf16_f32 v173, v170, v171
    s_mov_b64 exec, s[32:33]
    buffer_store_dwordx2 v[172:173], v12, {SWS}, s55 offen {st_flags}
    s_mov_b64 exec, -1
L_kvdone_{tag}:""")

vS = (16, 32)
vP = 48
vO = 56
vQL = 72
vQH = 76
vKL = 84
vKH = 88
vV = (92, 100)
vKA, vVA = 108, 109
vST = 128
VMASK = 0x0003FFFF0003FFFF

def q_finish(a, tag):
    a(f"""s_mov_b32 s34, 0x{QSCALE:x}
    s_bitcmp1_b32 {sHH}, 0
    s_cbranch_scc1 L_qodd_{tag}""")
    def body(lo, hi):
        for r in list(range(lo, lo + 8)) + [hi, hi + 1]:
            a(f"v_mul_f32 v{vD+r}, s34, v{vD+r}")
        for i in range(4):
            a(f"v_cvt_pk_bf16_f32 v{vQL+i}, v{vD+lo+2*i}, v{vD+lo+2*i+1}")
        a(f"v_cvt_pk_bf16_f32 v12, v{vD+hi}, v{vD+hi+1}")
    body(0, 8)
    a(f"s_branch L_qjoin_{tag}\nL_qodd_{tag}:")
    body(2, 14)
    a(f"L_qjoin_{tag}:")
    for i in range(8): a(f"v_mov_b32 v{vQH+i}, 0")
    for i in range(4): a(f"v_mov_b32 v{vP+4+i}, 0")
    a(f"""s_mov_b32 exec_hi, 0
    v_mov_b32 v{vQH+0}, v12
    v_mov_b32 v{vQH+3}, v12
    s_not_b64 exec, exec
    v_mov_b32 v{vQH+4}, v12
    v_mov_b32 v{vQH+7}, v12
    s_mov_b64 exec, -1""")

def attn_setup(a):
    for i in range(16): a(f"v_mov_b32 v{vO+i}, 0")
    a(f"""v_and_b32 v12, 31, v{vLANE}
    v_cmp_eq_u32 vcc, 18, v12
    v_mov_b32 v13, 0x3f803f80
    v_lshrrev_b32 v14, 5, v{vLANE}
    v_cndmask_b32 v13, 0, v13, vcc""")
    for b in vV:
        for i in range(8): a(f"v_mov_b32 v{b+i}, v13")
    a(f"""v_mul_u32_u24 v14, 288, v14
    v_lshl_add_u32 v14, v12, 4, v14
    v_add_u32 v{vVA}, 9216, v14
    v_mov_b32 v{vKA}, v{vL16}""")

def kv_issue(a, ld_flags):
    a(f"""s_lshr_b32 s34, {sRB}, 2
    s_add_u32 s34, s34, 1
    s_and_b32 s34, s34, 7
    s_mul_i32 s34, s34, {BLK}
    s_lshl_b32 s35, {sW}, 10
    s_add_u32 s34, s34, s35
    s_mov_b32 s52, 8192
    s_mov_b32 s53, {KVSZ}""")
    for r in range(18):
        a(f"buffer_load_dwordx4 {vr(vST+4*r,4)}, v{vL16}, {SWS}, s34 offen {ld_flags}")
        if r < 17:
            a("s_add_u32 s34, s34, s52\ns_sub_u32 s35, s34, s53\ns_min_u32 s34, s34, s35")

def kv_write(a, r0, r1):
    for r in range(r0, r1):
        a(f"ds_write_b128 v{110 + r//8}, {vr(vST+4*r,4)} offset:{(r%8)*8192}")

def qh(t): return vr(vQH + 2 * (2 * (t & 1) + ((t >> 1) & 1)), 2)
def kh(t): return vr(vKH + 2 * ((t & 7) >> 2), 2)
def koff(t): return (t >> 3) * BLK + (t & 7) * 1024
def voff(t): return (t >> 3) * BLK + (t & 7) * 1152

def attn_pre(a):
    a(f"""s_mov_b32 s60, 0x{VMASK & 0xffffffff:x}
    s_mov_b32 s61, 0x{VMASK >> 32:x}
    ds_read_b128 {vr(vKH,4)}, v{vKA} offset:8192
    ds_read_b128 {vr(vKL,4)}, v{vKA}
    s_mov_b64 exec, s[60:61]
    ds_read_b128 {vr(vV[0],4)}, v{vVA}
    ds_read_b128 {vr(vV[0]+4,4)}, v{vVA} offset:576
    s_mov_b64 exec, -1
    s_waitcnt lgkmcnt(2)
    v_mfma_f32_32x32x8_bf16 {vr(vS[0],16)}, {kh(0)}, {qh(0)}, 0
    v_mfma_f32_32x32x16_bf16 {vr(vS[0],16)}, {vr(vKL,4)}, {vr(vQL,4)}, {vr(vS[0],16)}
    ds_read_b128 {vr(vKL,4)}, v{vKA} offset:{koff(1)}
    s_mov_b32 s62, 0
    s_nop 7
    s_nop 3""")

def attn_step(a, t):
    S, N = vS[t & 1], vS[(t + 1) & 1]
    e = lambda i: a(f"v_exp_f32 v{S+i}, v{S+i}")
    c = lambda i: a(f"v_cvt_pk_bf16_f32 v{vP+i}, v{S+2*i}, v{S+2*i+1}")
    Vp, Vc = vV[(t + 1) & 1], vV[t & 1]
    e(0); e(1)
    a(f"v_mfma_f32_32x32x16_bf16 {vr(vO,16)}, {vr(Vp+4,4)}, {vr(vP+4,4)}, {vr(vO,16)}")
    a(f"""s_mov_b64 exec, s[60:61]
    ds_read_b128 {vr(Vp,4)}, v{vVA} offset:{voff(t+1)}
    ds_read_b128 {vr(Vp+4,4)}, v{vVA} offset:{voff(t+1)+576}
    s_mov_b64 exec, -1""")
    e(2); e(3); c(0); c(1)
    a(f"v_mfma_f32_32x32x8_bf16 {vr(N,16)}, {kh(t+1)}, {qh(t+1)}, 0")
    e(4); e(5); e(6); e(7); c(2)
    a("s_waitcnt lgkmcnt(2)")
    c(3)
    a(f"v_mfma_f32_32x32x16_bf16 {vr(N,16)}, {vr(vKL,4)}, {vr(vQL,4)}, {vr(N,16)}")
    a(f"ds_read_b128 {vr(vKL,4)}, v{vKA} offset:{koff(t+2)}")
    if t == 5: a(f"ds_read_b64 {vr(vKH,2)}, v{vKA} offset:{BLK+8192}")
    if t == 6: a(f"ds_read_b64 {vr(vKH+2,2)}, v{vKA} offset:{BLK+8192+8}")
    e(8); e(9); e(10); e(11)
    a(f"v_mfma_f32_32x32x16_bf16 {vr(vO,16)}, {vr(Vc,4)}, {vr(vP,4)}, {vr(vO,16)}")
    c(4); c(5)
    e(12); e(13); e(14); e(15)
    c(6); c(7)

def attn_loop(a, tag, hookmask):
    a(f"s_mov_b32 s63, {hookmask}")
    a(f".p2align 6\nL_att_{tag}:")
    for t in range(8):
        attn_step(a, t)
        if t == 4:
            a(f"""s_bitcmp1_b32 s63, s62
            s_cbranch_scc1 L_hook_{tag}
            L_hookret_{tag}:""")
    a(f"""v_add_u32 v{vKA}, {BLK}, v{vKA}
    v_add_u32 v{vVA}, {BLK}, v{vVA}
    s_add_u32 s62, s62, 1
    s_cmp_lt_u32 s62, 8
    s_cbranch_scc1 L_att_{tag}
    v_mfma_f32_32x32x16_bf16 {vr(vO,16)}, {vr(vV[1]+4,4)}, {vr(vP+4,4)}, {vr(vO,16)}""")

def o_finish(a, tag, st_flags):
    a(f"""s_mul_i32 s34, {sRB}, 73728
    s_mul_i32 s35, {sTH}, 36864
    s_add_u32 s34, s34, s35
    s_mul_i32 s35, {sG}, 144
    s_add_u32 s34, s34, s35
    s_mul_i32 s35, {sHH}, 36
    s_add_u32 s34, s34, s35
    s_add_u32 s34, s34, {WS_O}
    v_and_b32 v12, 31, v{vLANE}
    v_mul_u32_u24 v12, 1152, v12
    v_lshrrev_b32 v13, 5, v{vLANE}
    v_lshl_add_u32 v12, v13, 4, v12
    s_nop 3
    L_ofin_{tag}:
    v_mov_b32 v13, v{vO+10}
    v_mov_b32 v14, v{vO+10}
    s_nop 1
    v_permlane32_swap_b32 v13, v14
    s_nop 1
    v_rcp_f32 v14, v13
    s_nop 0""")
    for i in range(10): a(f"v_mul_f32 v{vO+i}, v{vO+i}, v14")
    for i in range(5): a(f"v_cvt_pk_bf16_f32 v{16+i}, v{vO+2*i}, v{vO+2*i+1}")
    a(f"""buffer_store_dwordx4 v[16:19], v12, {SWS}, s34 offen {st_flags}
    s_mov_b32 exec_hi, 0
    buffer_store_dword v20, v12, {SWS}, s34 offen offset:32 {st_flags}
    s_mov_b64 exec, -1""")

def issue_wo(a):
    a(f"""s_mul_i32 s34, {sW}, {6*1152}
    s_mul_i32 s35, {sG}, 144
    s_add_u32 s34, s34, s35
    s_mul_i32 s35, {sW}, {6*144}
    s_add_u32 m0, s35, {WIMG}""")
    set_exec(a, MASK54)
    for i in range(12):
        a(f"buffer_load_dwordx4 v{vWSRC}, {SWO}, s34 offen lds")
        if i < 11: a(f"s_add_u32 m0, m0, {48*144}\ns_add_u32 s34, s34, {48*1152}")
    a("s_mov_b64 exec, -1")

vOST = 128
def issue_o(a, ld_flags):
    a(f"""s_mul_i32 s34, {sRB}, 73728
    s_mul_i32 s35, {sW}, 9216
    s_add_u32 s34, s34, s35
    s_add_u32 s34, s34, {WS_O}""")
    for c in range(9):
        a(f"buffer_load_dwordx4 {vr(vOST+4*c,4)}, v{vXSRC}, {SWS}, s34 offen offset:{128*c} {ld_flags}")
    a(f"""s_mul_i32 s35, {sTH}, 36864
    s_lshl_b32 s33, {sHH}, 10
    s_add_u32 s35, s35, s33
    s_add_u32 s35, s35, {XIMG}
    v_add_u32 v113, s35, v{vL16}""")

def out_proj(a, tag):
    for st in range(3):
        a(f"s_waitcnt vmcnt({6-3*st})")
        for c in range(3 * st, 3 * st + 3):
            a(f"ds_write_b128 v113, {vr(vOST+4*c,4)} offset:{c*4096}")
        a("s_waitcnt lgkmcnt(0)\ns_barrier")
        proj_stage(a, 12 * st, 12 * st + 12)
    a(f"""s_mul_i32 s34, {sRB}, 73728
    s_mul_i32 s35, {sTH}, 36864
    s_add_u32 s34, s34, s35
    s_mul_i32 s35, {sG}, 144
    s_add_u32 s34, s34, s35
    s_mul_i32 s35, {sHH}, 36
    s_add_u32 s34, s34, s35
    v_and_b32 v12, 31, v{vLANE}
    v_mul_u32_u24 v12, 1152, v12
    v_lshrrev_b32 v13, 5, v{vLANE}
    v_lshl_add_u32 v12, v13, 4, v12
    s_nop 1
    s_bitcmp1_b32 {sHH}, 0
    s_cbranch_scc1 L_oodd_{tag}""")
    def body(lo, hi):
        for i in range(4):
            a(f"v_cvt_pk_bf16_f32 v{32+i}, v{vD+lo+2*i}, v{vD+lo+2*i+1}")
        a(f"v_cvt_pk_bf16_f32 v36, v{vD+hi}, v{vD+hi+1}")
    body(0, 8)
    a(f"s_branch L_ojoin_{tag}\nL_oodd_{tag}:")
    body(2, 14)
    a(f"""L_ojoin_{tag}:
    buffer_store_dwordx4 v[32:35], v12, {SOUT}, s34 offen
    s_mov_b32 exec_hi, 0
    buffer_store_dword v36, v12, {SOUT}, s34 offen offset:32
    s_mov_b64 exec, -1""")

def kernel_head(a, name):
    a.l.append(f".globl {name}\n.p2align 8\n.type {name},@function\n{name}:")
def descriptor(name, nv=256):
    return f""".p2align 6
.amdhsa_kernel {name}
  .amdhsa_next_free_vgpr {nv}
  .amdhsa_next_free_sgpr 96
  .amdhsa_accum_offset {nv}
  .amdhsa_group_segment_fixed_size 0
  .amdhsa_kernarg_size 64
  .amdhsa_user_sgpr_count 2
  .amdhsa_user_sgpr_kernarg_segment_ptr 1
  .amdhsa_system_sgpr_workgroup_id_x 1
.end_amdhsa_kernel
"""

HEADER = open("cdna_kernels/%s.s.ref" % NAME).read().split("; Override launch")[0]

def gen_v1():
    a = Asm()
    kernel_head(a, "kvproj_kernel")
    prologue(a, "k1")
    a(f"s_mul_i32 s52, {sW}, 12")
    issue_wkv(a, 12)
    issue_x(a)
    a(f"""s_waitcnt vmcnt(0)
    s_barrier
    s_cmp_ge_u32 {sW}, 2
    s_cbranch_scc1 L_end_k1""")
    kv_proj(a, "k1", "")
    a("L_end_k1:\ns_endpgm")
    kernel_head(a, "attn_kernel")
    prologue(a, "k2")
    issue_x(a)
    a(f"s_cmp_lt_u32 {sW}, 2\ns_cbranch_scc1 L_nowq_k2")
    issue_wq(a)
    a("L_nowq_k2:")
    proj_addrs(a)
    attn_setup(a)
    a(f"""s_lshl_b32 s35, {sW}, 10
    v_add_u32 v110, s35, v{vL16}
    v_add_u32 v111, 0x10000, v110
    v_add_u32 v112, 0x20000, v110""")
    a(f"s_cmp_ge_u32 {sW}, 2\ns_cbranch_scc1 L_w2_k2\ns_waitcnt vmcnt(0)\nL_w2_k2:")
    for st in range(4):
        if st < 3: a(f"s_waitcnt vmcnt({12-4*st})")
        else:
            a(f"s_waitcnt vmcnt(0)\ns_cmp_lt_u32 {sW}, 2\ns_cbranch_scc1 L_nowt_k2")
            write_wq_tail(a)
            a("L_nowt_k2:\ns_waitcnt lgkmcnt(0)")
        a("s_barrier")
        if st == 3: kv_issue(a, "")
        proj_stage(a, 9 * st, 9 * st + 9)
    a("s_nop 7\ns_nop 3")
    q_finish(a, "k2")
    a("s_barrier")
    a("s_waitcnt vmcnt(15)")
    kv_write(a, 0, 3)
    a("s_waitcnt lgkmcnt(0)\ns_barrier")
    attn_pre(a)
    attn_loop(a, "k2", 3)
    o_finish(a, "k2", "")
    a("L_end_k2:\ns_endpgm")
    a(f"""L_hook_k2:
    s_cmp_lg_u32 s62, 0
    s_cbranch_scc1 L_hook1_k2
    s_waitcnt vmcnt(9)""")
    kv_write(a, 3, 9)
    a("s_waitcnt lgkmcnt(0)\ns_barrier\ns_branch L_hookret_k2\nL_hook1_k2:\ns_waitcnt vmcnt(0)")
    kv_write(a, 9, 18)
    a("s_waitcnt lgkmcnt(0)\ns_barrier\ns_branch L_hookret_k2")
    kernel_head(a, "oproj_kernel")
    prologue(a, "k3")
    issue_wo(a)
    issue_o(a, "")
    proj_addrs(a)
    out_proj(a, "k3")
    a("L_end_k3:\ns_endpgm")
    hdr = HEADER + "".join(f"; @launch kernel={k} grid=(256,1,1) block=(512,1,1) lds={LDS_TOTAL}\n"
                           for k in ("kvproj_kernel", "attn_kernel", "oproj_kernel"))
    return (hdr + '.amdgcn_target "amdgcn-amd-amdhsa--gfx950"\n.text\n' + a.text() + '.section .rodata,"a"\n'
            + "".join(descriptor(k) for k in ("kvproj_kernel", "attn_kernel", "oproj_kernel")))

if __name__ == "__main__":
    mode = sys.argv[1] if len(sys.argv) > 1 else "v1"
    out = sys.argv[2] if len(sys.argv) > 2 else f"cdna_kernels/{NAME}.s"
    open(out, "w").write({"v1": gen_v1}[mode]())
    print("wrote", out)
```

```python
import sys, math, struct

NAME = "standalone__grouped_kv_mqa__prompt"
WIMG = 0
WKV  = 62208
XIMG = 85248
BLK  = 18432
KVSZ = 8 * BLK
LDS_TOTAL = 163840
WS_KV = 0
WS_FLAG = 0x30000
WS_OFLAG = 0x34000
WS_EPOCH = 0x38000
WS_O = 0x40000
WS_SIZE = WS_O + 2048 * 1152
sW, sRB, sG, sHH, sTH = "s3", "s4", "s5", "s6", "s7"
SX, SWQ, SWKV, SWO, SOUT, SWS = "s[8:11]", "s[12:15]", "s[16:19]", "s[20:23]", "s[24:27]", "s[28:31]"
QSCALE = struct.unpack("<I", struct.pack("<f", math.log2(math.e) / math.sqrt(18.0)))[0]

class Asm:
    def __init__(s): s.l = []
    def __call__(s, t):
        for x in t.strip("\n").split("\n"):
            x = x.strip()
            if not x: continue
            s.l.append(x if x.endswith(":") else "    " + x)
    def text(s): return "\n".join(s.l) + "\n"

STAMPS = False
STAMP_OFF = 8 << 20
def stamp(a, j):
    if STAMPS: a(f"s_memrealtime s[{64+2*j}:{65+2*j}]")
def cstamp(a, j):
    if STAMPS: a(f"s_memtime s[{64+2*j}:{65+2*j}]")
def finish(a, tag, li, n):
    a(f"L_end_{tag}:")
    if STAMPS:
        stamp(a, 7)
        a(f"""s_waitcnt vmcnt(0) lgkmcnt(0)
        s_mov_b64 exec, -1
        s_lshl_b32 s34, s2, 3
        s_add_u32 s34, s34, {sW}
        s_lshl_b32 s34, s34, 6
        s_add_u32 s34, s34, {STAMP_OFF + li*256*8*64}
        v_mov_b32 v2, 0""")
        for j in range(n): a(f"v_mov_b32 v3, s{64+2*j}\nbuffer_store_dword v3, v2, {SWS}, s34 offen offset:{4*j}\ns_waitcnt vmcnt(0)")
    a(f"L_exit_{tag}:\ns_endpgm")

def vr(a, n): return f"v[{a}:{a+n-1}]"

def srd(a, base, lo, nbytes):
    a(f"""s_mov_b32 s{base}, s{lo}
    s_and_b32 s{base+1}, s{lo+1}, 0xffff
    s_mov_b32 s{base+2}, {nbytes}
    s_mov_b32 s{base+3}, 0x20000""")

vLANE, vXSRC, vWSRC, vKVSRC, vL16 = 1, 2, 3, 4, 5
vXA = 6
vWA = 10

def prologue(a, tag):
    if STAMPS:
        for j in range(12): a(f"s_mov_b32 s{64+2*j}, 0")
    stamp(a, 0)
    a(f"""s_cmp_ge_u32 s2, 256
    s_cbranch_scc1 L_exit_{tag}
    s_load_dwordx16 s[36:51], s[0:1], 0
    v_lshrrev_b32 v12, 6, v0
    v_and_b32 v{vLANE}, 63, v0
    v_readfirstlane_b32 {sW}, v12
    s_and_b32 {sRB}, s2, 7
    s_lshl_b32 {sRB}, {sRB}, 2
    s_lshr_b32 {sG}, s2, 6
    s_add_u32 {sRB}, {sRB}, {sG}
    s_bfe_u32 {sG}, s2, 0x30003
    s_and_b32 {sHH}, {sW}, 3
    s_lshr_b32 {sTH}, {sW}, 2
    v_lshlrev_b32 v{vL16}, 4, v{vLANE}
    s_lshl_b32 s34, {sHH}, 2
    v_lshrrev_b32 v12, 4, v{vLANE}
    v_add_u32 v12, s34, v12
    v_xor_b32 v12, v12, v{vLANE}
    v_and_b32 v12, 7, v12
    v_lshrrev_b32 v13, 3, v{vLANE}
    v_mul_u32_u24 v13, 1152, v13
    v_lshl_add_u32 v{vXSRC}, v12, 4, v13
    v_mul_u32_u24 v12, 57, v{vLANE}
    v_lshrrev_b32 v12, 9, v12
    v_mul_u32_u24 v12, 1008, v12
    v_add_u32 v{vWSRC}, v12, v{vL16}
    v_mul_u32_u24 v12, 205, v{vLANE}
    v_lshrrev_b32 v12, 11, v12
    v_sub_u32 v12, v{vLANE}, v12
    v_lshlrev_b32 v{vKVSRC}, 2, v12
    s_waitcnt lgkmcnt(0)""")
    srd(a, 8, 36, 2048 * 1152)
    srd(a, 12, 38, 576 * 1152)
    a(f"""s_bitcmp1_b32 {sG}, 0
    s_cselect_b32 s16, s42, s40
    s_cselect_b32 s17, s43, s41
    s_and_b32 s17, s17, 0xffff
    s_mov_b32 s18, {576*36}
    s_mov_b32 s19, 0x20000""")
    srd(a, 20, 44, 576 * 1152)
    srd(a, 24, 46, 2048 * 1152)
    srd(a, 28, 50, (16 << 20) if STAMPS else WS_SIZE)

def proj_addrs(a):
    a(f"""s_mul_i32 s34, {sTH}, 36864
    s_add_u32 s34, s34, {XIMG}
    v_and_b32 v12, 31, v{vLANE}
    v_lshrrev_b32 v13, 1, v12
    v_lshrrev_b32 v14, 5, v{vLANE}
    v_xor_b32 v13, v13, v14
    v_and_b32 v13, 7, v13
    v_lshlrev_b32 v13, 4, v13
    v_lshl_add_u32 v13, v12, 7, v13
    v_add_u32 v{vXA}, s34, v13
    v_xor_b32 v{vXA+1}, 32, v{vXA}
    v_xor_b32 v{vXA+2}, 64, v{vXA}
    v_xor_b32 v{vXA+3}, 0x60, v{vXA}""")
    a(f"""s_and_b32 s35, {sHH}, 1
    s_mul_i32 s34, {sHH}, 18
    s_sub_u32 s34, s34, s35
    s_sub_u32 s34, s34, s35
    s_lshl_b32 s34, s34, 1
    s_add_u32 s34, s34, {WIMG}
    s_add_u32 s35, s35, 2
    v_bfe_u32 v12, v{vLANE}, 4, 1
    v_bfe_u32 v13, v{vLANE}, 1, 1
    v_lshl_add_u32 v12, v12, 1, v13
    v_and_b32 v13, 1, v{vLANE}
    v_lshlrev_b32 v13, 4, v13
    v_lshl_add_u32 v13, v12, 3, v13
    v_cmp_le_u32 vcc, s35, v12
    v_bfe_u32 v14, v{vLANE}, 2, 2
    v_lshrrev_b32 v15, 5, v{vLANE}
    v_cndmask_b32 v13, v13, 32, vcc
    v_lshl_add_u32 v14, v15, 3, v14
    v_mul_u32_u24 v14, 144, v14
    v_add3_u32 v{vWA}, v13, v14, s34
    v_add_u32 v{vWA+1}, {18*2304}, v{vWA}""")

MASK54 = (1 << 54) - 1
MASKKV = sum(0x1FF << (10 * r) for r in range(6))
def set_exec(a, m):
    a(f"s_mov_b32 exec_lo, 0x{m & 0xffffffff:x}\ns_mov_b32 exec_hi, 0x{m >> 32:x}")

def issue_x(a):
    a(f"""s_mul_i32 s34, {sRB}, 73728
    s_mul_i32 s35, {sW}, 9216
    s_add_u32 s34, s34, s35
    s_mul_i32 s35, {sTH}, 36864
    s_lshl_b32 s33, {sHH}, 10
    s_add_u32 s35, s35, s33
    s_add_u32 m0, s35, {XIMG}
    s_nop 0""")
    for c in range(9):
        a(f"buffer_load_dwordx4 v{vXSRC}, {SX}, s34 offen lds")
        if c < 8: a("s_add_u32 m0, m0, 4096\ns_add_u32 s34, s34, 128")

def issue_wkv(a, n):
    a(f"""s_mul_i32 s34, s52, 216
    s_mul_i32 s35, s52, 240
    s_add_u32 m0, s35, {WKV}""")
    set_exec(a, MASKKV)
    for i in range(n):
        a(f"buffer_load_dword v{vKVSRC}, {SWKV}, s34 offen lds")
        if i < n - 1: a("s_add_u32 m0, m0, 240\ns_add_u32 s34, s34, 216")
    a("s_mov_b64 exec, -1")

vWST = 200
def issue_wq(a):
    a(f"""s_sub_u32 s33, {sW}, 2
    s_mul_i32 s34, s33, {6*1152}
    s_mul_i32 s35, {sG}, 144
    s_add_u32 s34, s34, s35
    s_mul_i32 s35, s33, {6*144}
    s_add_u32 m0, s35, {WIMG}""")
    set_exec(a, MASK54)
    for i in range(12):
        a(f"buffer_load_dwordx4 v{vWSRC}, {SWQ}, s34 offen lds")
        a(f"s_add_u32 m0, m0, {36*144}\ns_add_u32 s34, s34, {36*1152}")
    for i in range(4):
        a(f"buffer_load_dwordx4 {vr(vWST+4*i,4)}, v{vWSRC}, {SWQ}, s34 offen")
        if i < 3: a(f"s_add_u32 s34, s34, {36*1152}")
    a("s_mov_b64 exec, -1")

def write_wq_tail(a):
    a(f"""s_sub_u32 s33, {sW}, 2
    s_mul_i32 s35, s33, {6*144}
    s_add_u32 s35, s35, {WIMG + 432*144}
    v_add_u32 v12, s35, v{vL16}""")
    set_exec(a, MASK54)
    for i in range(4):
        a(f"ds_write_b128 v12, {vr(vWST+4*i,4)} offset:{i*36*144}")
    a("s_mov_b64 exec, -1")

vD = 16
vPA = 32
def proj_reads(a, s):
    b = vPA + 8 * (s % 3)
    wa, off = (vWA, s * 2304) if s < 18 else (vWA + 1, (s - 18) * 2304)
    a(f"""ds_read_b64_tr_b16 {vr(b,2)}, v{wa} offset:{off}
    ds_read_b64_tr_b16 {vr(b+2,2)}, v{wa} offset:{off+576}
    ds_read_b128 {vr(b+4,4)}, v{vXA+(s&3)} offset:{(s>>2)*4096}""")
def proj_stage(a, s0, s1):
    for s in range(s0, min(s0 + 3, s1)): proj_reads(a, s)
    for s in range(s0, s1):
        left = min(s1 - 1 - s, 2)
        a(f"s_waitcnt lgkmcnt({3*left})")
        b = vPA + 8 * (s % 3)
        c = "0" if s == 0 else vr(vD, 16)
        a(f"v_mfma_f32_32x32x16_bf16 {vr(vD,16)}, {vr(b,4)}, {vr(b+4,4)}, {c}")
        if s + 3 < s1: proj_reads(a, s + 3)

def kv_proj(a, tag, st_flags):
    a(f"""s_lshr_b32 s52, {sG}, 1
    s_lshr_b32 s53, s52, 1
    s_mul_i32 s34, s53, 36864
    s_add_u32 s34, s34, {XIMG}
    s_and_b32 s54, s52, 1
    s_lshl_b32 s35, s54, 4
    v_and_b32 v131, 15, v{vLANE}
    v_add_u32 v12, s35, v131
    v_lshrrev_b32 v13, 1, v12
    v_lshrrev_b32 v132, 4, v{vLANE}
    v_xor_b32 v13, v13, v132
    v_and_b32 v13, 7, v13
    v_lshlrev_b32 v13, 4, v13
    v_lshl_add_u32 v13, v12, 7, v13
    v_add_u32 v128, s34, v13
    v_xor_b32 v129, 64, v128
    v_bfe_u32 v13, v{vLANE}, 2, 2
    v_lshl_add_u32 v13, v132, 3, v13
    v_mul_u32_u24 v13, 40, v13
    v_and_b32 v14, 3, v{vLANE}
    v_lshlrev_b32 v14, 3, v14
    s_cmp_eq_u32 {sW}, 0
    s_cselect_b32 s35, -1, 0
    s_cselect_b32 s34, 0, 32
    s_add_u32 s34, s34, {WKV}
    v_and_b32 v14, s35, v14
    v_add3_u32 v130, v13, v14, s34
    s_bitcmp1_b32 {sG}, 0
    s_cbranch_scc1 L_kvV_{tag}""")
    DEPTH = 4
    def reads(s):
        b = 136 + 8 * (s % DEPTH)
        a(f"""ds_read_b64_tr_b16 {vr(b,2)}, v130 offset:{s*1280}
        ds_read_b64_tr_b16 {vr(b+2,2)}, v130 offset:{s*1280+160}
        ds_read_b128 {vr(b+4,4)}, v{128+(s&1)} offset:{(s>>1)*4096}""")
    def chain(isV):
        for s in range(DEPTH): reads(s)
        for s in range(18):
            left = min(17 - s, DEPTH - 1)
            a(f"s_waitcnt lgkmcnt({3*left})")
            b = 136 + 8 * (s % DEPTH)
            w_, x_ = vr(b, 4), vr(b + 4, 4)
            c = "0" if s == 0 else vr(168, 4)
            A_, B_ = (x_, w_) if isV else (w_, x_)
            a(f"v_mfma_f32_16x16x32_bf16 {vr(168,4)}, {A_}, {B_}, {c}")
            if s + DEPTH < 18: reads(s + DEPTH)
    common = f"""s_lshr_b32 s55, {sRB}, 2
    s_mul_i32 s55, s55, {BLK}
    s_and_b32 s56, {sRB}, 3
    s_lshl_b32 s56, s56, 1
    s_add_u32 s56, s56, s53"""
    chain(False)
    a(common)
    a(f"""s_lshl_b32 s35, s54, 4
    v_add_u32 v12, s35, v131
    s_cmp_lg_u32 {sW}, 0
    s_cbranch_scc1 L_kvKhi_{tag}
    s_lshl_b32 s34, s56, 10
    s_add_u32 s55, s55, s34
    v_lshrrev_b32 v13, 1, v132
    v_lshl_add_u32 v12, v13, 5, v12
    v_lshlrev_b32 v12, 4, v12
    v_and_b32 v13, 1, v132
    v_lshl_add_u32 v12, v13, 3, v12
    v_cvt_pk_bf16_f32 v172, v168, v169
    v_cvt_pk_bf16_f32 v173, v170, v171
    buffer_store_dwordx2 v[172:173], v12, {SWS}, s55 offen {st_flags}
    s_branch L_kvdone_{tag}
L_kvKhi_{tag}:
    s_and_b32 s34, s56, 1
    s_lshl_b32 s34, s34, 9
    s_lshr_b32 s35, s56, 1
    s_lshl_b32 s35, s35, 2
    s_add_u32 s34, s34, s35
    s_add_u32 s55, s55, s34
    s_add_u32 s55, s55, 8192
    v_lshlrev_b32 v12, 4, v12
    v_cvt_pk_bf16_f32 v172, v168, v169
    s_mov_b64 exec, 0xffff
    buffer_store_dword v172, v12, {SWS}, s55 offen {st_flags}
    s_mov_b64 exec, -1
    s_branch L_kvdone_{tag}
L_kvV_{tag}:""")
    chain(True)
    a(common)
    a(f"""; V : 9216 + tau*1152 + f*576 + (G&1)*288 + arow*16 + (G>>1)*8
    s_mul_i32 s34, s56, 1152
    s_mul_i32 s35, s54, 576
    s_add_u32 s55, s55, s34
    s_add_u32 s55, s55, s35
    s_add_u32 s55, s55, 9216
    v_and_b32 v12, 3, v131
    v_and_b32 v13, 4, v131
    v_lshl_add_u32 v12, v13, 1, v12
    v_bfe_u32 v13, v131, 3, 1
    v_lshl_add_u32 v12, v13, 2, v12
    s_cmp_eq_u32 {sW}, 0
    s_cselect_b32 s34, 0, 16
    s_cselect_b32 s32, -1, 0x00030003
    s_cselect_b32 s33, -1, 0x00030003
    v_add_u32 v12, s34, v12
    v_lshlrev_b32 v12, 4, v12
    v_and_b32 v13, 1, v132
    v_mul_u32_u24 v13, 288, v13
    v_add_u32 v12, v12, v13
    v_lshrrev_b32 v13, 1, v132
    v_lshl_add_u32 v12, v13, 3, v12
    v_cvt_pk_bf16_f32 v172, v168, v169
    v_cvt_pk_bf16_f32 v173, v170, v171
    s_mov_b64 exec, s[32:33]
    buffer_store_dwordx2 v[172:173], v12, {SWS}, s55 offen {st_flags}
    s_mov_b64 exec, -1
L_kvdone_{tag}:""")

vS = (16, 32)
vP = 48
vO = 56
vQL = 72
vQH = 76
vKL = 84
vKH = 88
vV = (92, 100)
vKA, vVA = 108, 109
vST = 128
VMASK = 0x0003FFFF0003FFFF

def q_finish(a, tag):
    a(f"""s_mov_b32 s34, 0x{QSCALE:x}
    s_bitcmp1_b32 {sHH}, 0
    s_cbranch_scc1 L_qodd_{tag}""")
    def body(lo, hi):
        for r in list(range(lo, lo + 8)) + [hi, hi + 1]:
            a(f"v_mul_f32 v{vD+r}, s34, v{vD+r}")
        for i in range(4):
            a(f"v_cvt_pk_bf16_f32 v{vQL+i}, v{vD+lo+2*i}, v{vD+lo+2*i+1}")
        a(f"v_cvt_pk_bf16_f32 v12, v{vD+hi}, v{vD+hi+1}")
    body(0, 8)
    a(f"s_branch L_qjoin_{tag}\nL_qodd_{tag}:")
    body(2, 14)
    a(f"L_qjoin_{tag}:")
    for i in range(8): a(f"v_mov_b32 v{vQH+i}, 0")
    for i in range(4): a(f"v_mov_b32 v{vP+4+i}, 0")
    a(f"""s_mov_b32 exec_hi, 0
    v_mov_b32 v{vQH+0}, v12
    v_mov_b32 v{vQH+3}, v12
    s_not_b64 exec, exec
    v_mov_b32 v{vQH+4}, v12
    v_mov_b32 v{vQH+7}, v12
    s_mov_b64 exec, -1""")

def attn_setup(a):
    for i in range(16): a(f"v_mov_b32 v{vO+i}, 0")
    a(f"""v_and_b32 v12, 31, v{vLANE}
    v_cmp_eq_u32 vcc, 18, v12
    v_mov_b32 v13, 0x3f803f80
    v_lshrrev_b32 v14, 5, v{vLANE}
    v_cndmask_b32 v13, 0, v13, vcc""")
    for b in vV:
        for i in range(8): a(f"v_mov_b32 v{b+i}, v13")
    a(f"""v_mul_u32_u24 v14, 288, v14
    v_lshl_add_u32 v14, v12, 4, v14
    v_add_u32 v{vVA}, 9216, v14
    v_mov_b32 v{vKA}, v{vL16}""")

def kv_issue(a, ld_flags):
    a(f"""s_lshr_b32 s34, {sRB}, 2
    s_add_u32 s34, s34, 1
    s_and_b32 s34, s34, 7
    s_mul_i32 s34, s34, {BLK}
    s_lshl_b32 s35, {sW}, 10
    s_add_u32 s34, s34, s35
    s_mov_b32 s52, 8192
    s_mov_b32 s53, {KVSZ}""")
    for r in range(18):
        a(f"buffer_load_dwordx4 {vr(vST+4*r,4)}, v{vL16}, {SWS}, s34 offen {ld_flags}")
        if r < 17:
            a("s_add_u32 s34, s34, s52\ns_sub_u32 s35, s34, s53\ns_min_u32 s34, s34, s35")

def kv_write(a, r0, r1):
    for r in range(r0, r1):
        a(f"ds_write_b128 v{110 + r//8}, {vr(vST+4*r,4)} offset:{(r%8)*8192}")

def qh(t): return vr(vQH + 2 * (2 * (t & 1) + ((t >> 1) & 1)), 2)
def kh(t): return vr(vKH + 2 * ((t & 7) >> 2), 2)
def koff(t): return (t >> 3) * BLK + (t & 7) * 1024
def voff(t): return (t >> 3) * BLK + (t & 7) * 1152

def attn_pre(a):
    a(f"""s_mov_b32 s60, 0x{VMASK & 0xffffffff:x}
    s_mov_b32 s61, 0x{VMASK >> 32:x}
    ds_read_b128 {vr(vKH,4)}, v{vKA} offset:8192
    ds_read_b128 {vr(vKL,4)}, v{vKA}
    s_mov_b64 exec, s[60:61]
    ds_read_b128 {vr(vV[0],4)}, v{vVA}
    ds_read_b128 {vr(vV[0]+4,4)}, v{vVA} offset:576
    s_mov_b64 exec, -1
    s_waitcnt lgkmcnt(2)
    v_mfma_f32_32x32x8_bf16 {vr(vS[0],16)}, {kh(0)}, {qh(0)}, 0
    v_mfma_f32_32x32x16_bf16 {vr(vS[0],16)}, {vr(vKL,4)}, {vr(vQL,4)}, {vr(vS[0],16)}
    ds_read_b128 {vr(vKL,4)}, v{vKA} offset:{koff(1)}
    s_mov_b32 s62, 0
    s_nop 7
    s_nop 3""")

def attn_step(a, t):
    S, N = vS[t & 1], vS[(t + 1) & 1]
    e = lambda i: a(f"v_exp_f32 v{S+i}, v{S+i}")
    c = lambda i: a(f"v_cvt_pk_bf16_f32 v{vP+i}, v{S+2*i}, v{S+2*i+1}")
    Vp, Vc = vV[(t + 1) & 1], vV[t & 1]
    e(0); e(1)
    a(f"v_mfma_f32_32x32x16_bf16 {vr(vO,16)}, {vr(Vp+4,4)}, {vr(vP+4,4)}, {vr(vO,16)}")
    a(f"""s_mov_b64 exec, s[60:61]
    ds_read_b128 {vr(Vp,4)}, v{vVA} offset:{voff(t+1)}
    ds_read_b128 {vr(Vp+4,4)}, v{vVA} offset:{voff(t+1)+576}
    s_mov_b64 exec, -1""")
    e(2); e(3); c(0); c(1)
    a(f"v_mfma_f32_32x32x8_bf16 {vr(N,16)}, {kh(t+1)}, {qh(t+1)}, 0")
    e(4); e(5); e(6); e(7); c(2)
    a("s_waitcnt lgkmcnt(2)")
    c(3)
    a(f"v_mfma_f32_32x32x16_bf16 {vr(N,16)}, {vr(vKL,4)}, {vr(vQL,4)}, {vr(N,16)}")
    a(f"ds_read_b128 {vr(vKL,4)}, v{vKA} offset:{koff(t+2)}")
    if t == 5: a(f"ds_read_b64 {vr(vKH,2)}, v{vKA} offset:{BLK+8192}")
    if t == 6: a(f"ds_read_b64 {vr(vKH+2,2)}, v{vKA} offset:{BLK+8192+8}")
    e(8); e(9); e(10); e(11)
    a(f"v_mfma_f32_32x32x16_bf16 {vr(vO,16)}, {vr(Vc,4)}, {vr(vP,4)}, {vr(vO,16)}")
    c(4); c(5)
    e(12); e(13); e(14); e(15)
    c(6); c(7)

def attn_loop(a, tag, hookmask):
    a(f"s_mov_b32 s63, {hookmask}")
    a(f".p2align 6\nL_att_{tag}:")
    for t in range(8):
        attn_step(a, t)
        if t == 4:
            a(f"""s_bitcmp1_b32 s63, s62
            s_cbranch_scc1 L_hook_{tag}
            L_hookret_{tag}:""")
    a(f"""v_add_u32 v{vKA}, {BLK}, v{vKA}
    v_add_u32 v{vVA}, {BLK}, v{vVA}
    s_add_u32 s62, s62, 1
    s_cmp_lt_u32 s62, 8
    s_cbranch_scc1 L_att_{tag}
    v_mfma_f32_32x32x16_bf16 {vr(vO,16)}, {vr(vV[1]+4,4)}, {vr(vP+4,4)}, {vr(vO,16)}""")

def o_finish(a, tag, st_flags):
    a(f"""s_mul_i32 s34, {sRB}, 73728
    s_mul_i32 s35, {sTH}, 36864
    s_add_u32 s34, s34, s35
    s_mul_i32 s35, {sG}, 144
    s_add_u32 s34, s34, s35
    s_mul_i32 s35, {sHH}, 36
    s_add_u32 s34, s34, s35
    s_add_u32 s34, s34, {WS_O}
    v_and_b32 v12, 31, v{vLANE}
    v_mul_u32_u24 v12, 1152, v12
    v_lshrrev_b32 v13, 5, v{vLANE}
    v_lshl_add_u32 v12, v13, 4, v12
    s_nop 3
    L_ofin_{tag}:
    v_mov_b32 v13, v{vO+10}
    v_mov_b32 v14, v{vO+10}
    s_nop 1
    v_permlane32_swap_b32 v13, v14
    s_nop 1
    v_rcp_f32 v14, v13
    s_nop 0""")
    for i in range(10): a(f"v_mul_f32 v{vO+i}, v{vO+i}, v14")
    for i in range(5): a(f"v_cvt_pk_bf16_f32 v{16+i}, v{vO+2*i}, v{vO+2*i+1}")
    a(f"""buffer_store_dwordx4 v[16:19], v12, {SWS}, s34 offen {st_flags}
    s_mov_b32 exec_hi, 0
    buffer_store_dword v20, v12, {SWS}, s34 offen offset:32 {st_flags}
    s_mov_b64 exec, -1""")

def issue_wo(a):
    a(f"""s_mul_i32 s34, {sW}, {6*1152}
    s_mul_i32 s35, {sG}, 144
    s_add_u32 s34, s34, s35
    s_mul_i32 s35, {sW}, {6*144}
    s_add_u32 m0, s35, {WIMG}""")
    set_exec(a, MASK54)
    for i in range(12):
        a(f"buffer_load_dwordx4 v{vWSRC}, {SWO}, s34 offen lds")
        if i < 11: a(f"s_add_u32 m0, m0, {48*144}\ns_add_u32 s34, s34, {48*1152}")
    a("s_mov_b64 exec, -1")

vOST = 128
def issue_o(a, ld_flags):
    a(f"""s_mul_i32 s34, {sRB}, 73728
    s_mul_i32 s35, {sW}, 9216
    s_add_u32 s34, s34, s35
    s_add_u32 s34, s34, {WS_O}""")
    for c in range(9):
        a(f"buffer_load_dwordx4 {vr(vOST+4*c,4)}, v{vXSRC}, {SWS}, s34 offen offset:{128*c} {ld_flags}")
    a(f"""s_mul_i32 s35, {sTH}, 36864
    s_lshl_b32 s33, {sHH}, 10
    s_add_u32 s35, s35, s33
    s_add_u32 s35, s35, {XIMG}
    v_add_u32 v113, s35, v{vL16}""")

STO = 0
def out_proj(a, tag):
    for st in range(3):
        a(f"s_waitcnt vmcnt({6-3*st})")
        for c in range(3 * st, 3 * st + 3):
            a(f"ds_write_b128 v113, {vr(vOST+4*c,4)} offset:{c*4096}")
        a("s_waitcnt lgkmcnt(0)\ns_barrier")
        stamp(a, 2 + st + STO)
        proj_stage(a, 12 * st, 12 * st + 12)
    a(f"""s_mul_i32 s34, {sRB}, 73728
    s_mul_i32 s35, {sTH}, 36864
    s_add_u32 s34, s34, s35
    s_mul_i32 s35, {sG}, 144
    s_add_u32 s34, s34, s35
    s_mul_i32 s35, {sHH}, 36
    s_add_u32 s34, s34, s35
    v_and_b32 v12, 31, v{vLANE}
    v_mul_u32_u24 v12, 1152, v12
    v_lshrrev_b32 v13, 5, v{vLANE}
    v_lshl_add_u32 v12, v13, 4, v12
    s_nop 1
    s_bitcmp1_b32 {sHH}, 0
    s_cbranch_scc1 L_oodd_{tag}""")
    def body(lo, hi):
        for i in range(4):
            a(f"v_cvt_pk_bf16_f32 v{32+i}, v{vD+lo+2*i}, v{vD+lo+2*i+1}")
        a(f"v_cvt_pk_bf16_f32 v36, v{vD+hi}, v{vD+hi+1}")
    body(0, 8)
    a(f"s_branch L_ojoin_{tag}\nL_oodd_{tag}:")
    body(2, 14)
    a(f"""L_ojoin_{tag}:
    buffer_store_dwordx4 v[32:35], v12, {SOUT}, s34 offen
    s_mov_b32 exec_hi, 0
    buffer_store_dword v36, v12, {SOUT}, s34 offen offset:32
    s_mov_b64 exec, -1""")

def kernel_head(a, name):
    a.l.append(f".globl {name}\n.p2align 8\n.type {name},@function\n{name}:")
def descriptor(name, nv=256):
    return f""".p2align 6
.amdhsa_kernel {name}
  .amdhsa_next_free_vgpr {nv}
  .amdhsa_next_free_sgpr 96
  .amdhsa_accum_offset {nv}
  .amdhsa_group_segment_fixed_size 0
  .amdhsa_kernarg_size 64
  .amdhsa_user_sgpr_count 2
  .amdhsa_user_sgpr_kernarg_segment_ptr 1
  .amdhsa_system_sgpr_workgroup_id_x 1
.end_amdhsa_kernel
"""

HEADER = open("cdna_kernels/%s.s.ref" % NAME).read().split("; Override launch")[0]

def gen_v1():
    a = Asm()
    kernel_head(a, "kvproj_kernel")
    prologue(a, "k1")
    a(f"s_mul_i32 s52, {sW}, 12")
    issue_wkv(a, 12)
    issue_x(a)
    stamp(a, 1)
    a(f"""s_waitcnt vmcnt(0)
    s_barrier""")
    stamp(a, 2)
    a(f"""s_cmp_ge_u32 {sW}, 2
    s_cbranch_scc1 L_end_k1""")
    kv_proj(a, "k1", "")
    stamp(a, 3)
    finish(a, "k1", 0, 8)
    kernel_head(a, "attn_kernel")
    prologue(a, "k2")
    issue_x(a)
    a(f"s_cmp_lt_u32 {sW}, 2\ns_cbranch_scc1 L_nowq_k2")
    issue_wq(a)
    a("L_nowq_k2:")
    proj_addrs(a)
    attn_setup(a)
    a(f"""s_lshl_b32 s35, {sW}, 10
    v_add_u32 v110, s35, v{vL16}
    v_add_u32 v111, 0x10000, v110
    v_add_u32 v112, 0x20000, v110""")
    a(f"s_cmp_ge_u32 {sW}, 2\ns_cbranch_scc1 L_w2_k2\ns_waitcnt vmcnt(0)\nL_w2_k2:")
    for st in range(4):
        if st < 3: a(f"s_waitcnt vmcnt({12-4*st})")
        else:
            a(f"s_waitcnt vmcnt(0)\ns_cmp_lt_u32 {sW}, 2\ns_cbranch_scc1 L_nowt_k2")
            write_wq_tail(a)
            a("L_nowt_k2:\ns_waitcnt lgkmcnt(0)")
        a("s_barrier")
        if st == 0: stamp(a, 1)
        if st == 3: stamp(a, 2)
        if st == 3: kv_issue(a, "")
        proj_stage(a, 9 * st, 9 * st + 9)
    a("s_nop 7\ns_nop 3")
    q_finish(a, "k2")
    stamp(a, 3)
    a("s_barrier")
    a("s_waitcnt vmcnt(15)")
    kv_write(a, 0, 3)
    a("s_waitcnt lgkmcnt(0)\ns_barrier")
    stamp(a, 4)
    cstamp(a, 8)
    attn_pre(a)
    attn_loop(a, "k2", 3)
    stamp(a, 5)
    cstamp(a, 9)
    o_finish(a, "k2", "")
    stamp(a, 6)
    finish(a, "k2", 1, 10)
    a(f"""L_hook_k2:
    s_cmp_lg_u32 s62, 0
    s_cbranch_scc1 L_hook1_k2
    s_waitcnt vmcnt(9)""")
    kv_write(a, 3, 9)
    a("s_waitcnt lgkmcnt(0)\ns_barrier\ns_branch L_hookret_k2\nL_hook1_k2:\ns_waitcnt vmcnt(0)")
    kv_write(a, 9, 18)
    a("s_waitcnt lgkmcnt(0)\ns_barrier\ns_branch L_hookret_k2")
    kernel_head(a, "oproj_kernel")
    prologue(a, "k3")
    issue_wo(a)
    issue_o(a, "")
    proj_addrs(a)
    stamp(a, 1)
    out_proj(a, "k3")
    stamp(a, 5)
    finish(a, "k3", 2, 8)
    hdr = HEADER + "".join(f"; @launch kernel={k} grid=(256,1,1) block=(512,1,1) lds={LDS_TOTAL}\n"
                           for k in ("kvproj_kernel", "attn_kernel", "oproj_kernel"))
    return (hdr + '.amdgcn_target "amdgcn-amd-amdhsa--gfx950"\n.text\n' + a.text() + '.section .rodata,"a"\n'
            + "".join(descriptor(k) for k in ("kvproj_kernel", "attn_kernel", "oproj_kernel")))

if __name__ == "__main__":
    if "--stamps" in sys.argv:
        STAMPS = True; sys.argv.remove("--stamps")
    mode = sys.argv[1] if len(sys.argv) > 1 else "v1"
    out = sys.argv[2] if len(sys.argv) > 2 else f"cdna_kernels/{NAME}.s"
    open(out, "w").write({"v1": gen_v1}[mode]())
    print("wrote", out)
```

```python
import sys, math, struct
import gen as G
from gen import Asm, vr, srd, set_exec, MASK54, MASKKV, stamp, cstamp
from gen import sW, sRB, sG, sHH, sTH, SX, SWQ, SWKV, SWO, SOUT, SWS, vLANE, vXSRC, vWSRC, vKVSRC, vL16, vXA, vWA, vD
from gen import WIMG, WKV, XIMG, LDS_TOTAL, WS_FLAG, WS_OFLAG, WS_EPOCH, WS_O, WS_SIZE, NAME

VREC = 1216
BLK = 19456
KVSZ = 8 * BLK
QX = 140032
OX0, OX1 = 82944, 155648
SC = "sc1"
dS = (16, 48); dP = 80; dOA, dOB = 96, 112; dQA, dQB, dQH = 128, 132, 136
dKL = (140, 168); dKH = (144, 146); dV = (148, 156); dKA, dVA, dHA = 164, 165, 166
vST = 176
vTAG = 232
vFW = 234
vPOLL = 240
SPIN_BITS = 18
TAGC = 0x9E3779B97F4A7C15

def koff(u): return (u >> 2) * BLK + (u & 3) * 1024
def voff(u): return (u >> 2) * BLK + (u & 3) * VREC
def mf16(d, A, B): return f"v_mfma_f32_32x32x16_bf16 {vr(d,16)}, {vr(A,4)}, {vr(B,4)}, {vr(d,16)}"
def hi2b(N, u): return f"v_mfma_f32_32x32x4_2b_bf16 {vr(N,32)}, {vr(dKH[(u>>2)&1],2)}, {vr(dQH+2*((u>>1)&1),2)}, 0 cbsz:1 abid:{u&1}"

def prologue(a):
    if G.STAMPS:
        for j in range(12): a(f"s_mov_b32 s{64+2*j}, 0")
    stamp(a, 0)
    a(f"""s_cmp_ge_u32 s2, 256
    s_cbranch_scc1 L_exit_f
    s_load_dwordx16 s[36:51], s[0:1], 0
    v_lshrrev_b32 v12, 6, v0
    v_and_b32 v{vLANE}, 63, v0
    v_readfirstlane_b32 {sW}, v12
    s_and_b32 {sRB}, s2, 7
    s_lshl_b32 {sRB}, {sRB}, 2
    s_lshr_b32 {sG}, s2, 6
    s_add_u32 {sRB}, {sRB}, {sG}
    s_bfe_u32 {sG}, s2, 0x30003
    s_and_b32 {sHH}, {sW}, 3
    s_lshr_b32 {sTH}, {sW}, 2
    v_mul_u32_u24 v12, 205, v{vLANE}
    v_lshrrev_b32 v12, 11, v12
    v_sub_u32 v12, v{vLANE}, v12
    v_lshlrev_b32 v{vKVSRC}, 2, v12
    v_lshlrev_b32 v{vL16}, 4, v{vLANE}
    s_lshl_b32 s34, {sHH}, 2
    v_lshrrev_b32 v12, 4, v{vLANE}
    v_add_u32 v12, s34, v12
    v_xor_b32 v12, v12, v{vLANE}
    v_and_b32 v12, 7, v12
    v_lshrrev_b32 v13, 3, v{vLANE}
    v_mul_u32_u24 v13, 1152, v13
    v_lshl_add_u32 v{vXSRC}, v12, 4, v13
    v_mul_u32_u24 v12, 57, v{vLANE}
    v_lshrrev_b32 v12, 9, v12
    v_mul_u32_u24 v12, 1008, v12
    v_add_u32 v{vWSRC}, v12, v{vL16}
    v_mov_b32 v14, {WS_EPOCH}
    s_mov_b32 s18, {576*36}
    s_mov_b32 s19, 0x20000
    s_mov_b32 s30, {(16 << 20) if G.STAMPS else WS_SIZE}
    s_mov_b32 s31, 0x20000
    s_mov_b32 s10, {2048*1152}
    s_mov_b32 s11, 0x20000
    s_mov_b32 s14, {576*1152}
    s_mov_b32 s15, 0x20000
    s_mov_b32 s22, {576*1152}
    s_mov_b32 s23, 0x20000
    s_mov_b32 s26, {2048*1152}
    s_mov_b32 s27, 0x20000
    s_bitcmp1_b32 {sG}, 0
    s_waitcnt lgkmcnt(0)
    s_cselect_b32 s16, s42, s40
    s_cselect_b32 s17, s43, s41
    s_mov_b32 s28, s50
    s_mov_b32 s29, s51
    s_mov_b32 s8, s36
    s_mov_b32 s9, s37
    s_mov_b32 s12, s38
    s_mov_b32 s13, s39
    s_mov_b32 s20, s44
    s_mov_b32 s21, s45
    s_mov_b32 s24, s46
    s_mov_b32 s25, s47
    buffer_load_dwordx2 {vr(vTAG,2)}, v14, {SWS}, 0 offen {SC}""")

def attn_setup(a):
    for i in range(32): a(f"v_mov_b32 v{dOA+i}, 0")
    for i in range(4): a(f"v_mov_b32 v{dP+12+i}, 0")
    for i in range(4): a(f"v_mov_b32 v{dV[1]+4+i}, 0")
    a(f"""v_mov_b32 v{dS[1]+30}, 0
    v_mov_b32 v{dS[1]+31}, 0
    v_mov_b32 v{dQH+1}, 0
    v_mov_b32 v{dQH+2}, 0
    v_and_b32 v12, 31, v{vLANE}
    v_lshrrev_b32 v14, 5, v{vLANE}
    v_mul_u32_u24 v14, {VREC//4}, v14
    v_lshl_add_u32 v14, v12, 4, v14
    v_cmp_lt_u32 vcc, 18, v12
    s_mul_i32 s34, {sTH}, {4*VREC}
    s_add_u32 s34, s34, 9216
    v_add_u32 v{dVA}, s34, v14
    v_mov_b32 v13, 0x40000
    v_cndmask_b32 v{dVA}, v{dVA}, v13, vcc
    s_lshl_b32 s34, {sTH}, 12
    v_add_u32 v{dKA}, s34, v{vL16}
    s_lshl_b32 s34, {sTH}, 3
    s_add_u32 s34, s34, 8192
    v_add_u32 v{dHA}, s34, v{vL16}
    s_lshl_b32 s35, {sW}, 10
    v_add_u32 v{vFW}, s35, v{vL16}
    v_add_u32 v{vFW+1}, 0x10000, v{vFW}
    v_add_u32 v{vFW+2}, 0x20000, v{vFW}""")

def poll_issue(a):
    a(f"""s_lshr_b32 s34, {sRB}, 2
    s_add_u32 s34, s34, {sW}
    s_add_u32 s34, s34, 1
    s_and_b32 s34, s34, 7
    s_lshl_b32 s34, s34, 10
    s_add_u32 s57, s34, {WS_FLAG}
    v_and_b32 v{vPOLL+4}, 31, v{vLANE}
    v_lshlrev_b32 v{vPOLL+4}, 5, v{vPOLL+4}
    buffer_load_dwordx4 {vr(vPOLL,4)}, v{vPOLL+4}, {SWS}, s57 offen {SC}""")
def poll_wait(a, tag, first_wait):
    a(f"""s_mov_b32 s56, 0
    s_waitcnt vmcnt({first_wait})
    L_poll_{tag}:
    v_cmp_ne_u64 vcc, {vr(vPOLL,2)}, {vr(vTAG,2)}
    v_cmp_ne_u64 s[32:33], {vr(vPOLL+2,2)}, {vr(vTAG,2)}
    s_or_b64 vcc, vcc, s[32:33]
    s_cbranch_vccz L_pollok_{tag}
    s_add_u32 s56, s56, 1
    s_bitcmp1_b32 s56, {SPIN_BITS}
    s_cbranch_scc1 L_pollok_{tag}
    s_sleep 1
    buffer_load_dwordx4 {vr(vPOLL,4)}, v{vPOLL+4}, {SWS}, s57 offen {SC}
    s_waitcnt vmcnt(0)
    s_branch L_poll_{tag}
    L_pollok_{tag}:""")

def kv_issue(a, r0, r1):
    if r0 == 0:
        a(f"""s_lshr_b32 s58, {sRB}, 2
        s_add_u32 s58, s58, 1
        s_and_b32 s58, s58, 7
        s_mul_i32 s58, s58, {BLK}
        s_lshl_b32 s35, {sW}, 10
        s_add_u32 s58, s58, s35
        s_mov_b32 s52, 8192
        s_mov_b32 s53, {KVSZ}""")
    for r in range(r0, r1):
        a(f"buffer_load_dwordx4 {vr(vST+4*(r%10),4)}, v{vL16}, {SWS}, s58 offen {SC}")
        if r < 18: a("s_add_u32 s58, s58, s52\ns_sub_u32 s35, s58, s53\ns_min_u32 s58, s58, s35")
def kv_write(a, r0, r1):
    for r in range(r0, r1):
        a(f"ds_write_b128 v{vFW + r//8}, {vr(vST+4*(r%10),4)} offset:{(r%8)*8192}")

def q_finish(a):
    a(f"""s_mov_b32 s34, 0x{G.QSCALE:x}
    s_bitcmp1_b32 {sHH}, 0
    s_cbranch_scc1 L_qodd""")
    def body(lo, hi):
        for r in list(range(lo, lo + 8)) + [hi, hi + 1]: a(f"v_mul_f32 v{vD+r}, s34, v{vD+r}")
        for i in range(4): a(f"v_cvt_pk_bf16_f32 v{32+i}, v{vD+lo+2*i}, v{vD+lo+2*i+1}")
        a(f"v_cvt_pk_bf16_f32 v36, v{vD+hi}, v{vD+hi+1}")
    body(0, 8)
    a("s_branch L_qjoin\nL_qodd:")
    body(2, 14)
    a(f"""L_qjoin:
    s_lshl_b32 s34, {sW}, 10
    s_add_u32 s34, s34, {QX}
    v_add_u32 v37, s34, v{vL16}
    s_lshl_b32 s34, {sHH}, 8
    s_add_u32 s34, s34, {QX + 8192}
    v_lshl_add_u32 v39, v{vLANE}, 2, s34
    s_lshl_b32 s35, {sTH}, 7
    v_add_u32 v38, s35, v39
    s_lshl_b32 s34, {sHH}, 10
    s_add_u32 s34, s34, {QX}
    v_add_u32 v40, s34, v{vL16}""")
def q_write(a):
    a(f"""ds_write_b128 v37, v[32:35]
    s_mov_b32 exec_hi, 0
    ds_write_b32 v38, v36
    s_mov_b32 exec_hi, -1""")

def attn_pre(a):
    a(f"""ds_read_b32 v{dQH}, v39
    ds_read_b64 {vr(dKH[0],2)}, v{dHA}
    ds_read_b128 {vr(dQA,4)}, v40
    ds_read_b128 {vr(dKL[0],4)}, v{dKA}
    ds_read_b128 {vr(dQB,4)}, v40 offset:4096
    ds_read_b32 v{dQH+3}, v39
    ds_read_b128 {vr(dV[0],4)}, v{dVA}
    ds_read_b128 {vr(dV[0]+4,4)}, v{dVA} offset:{VREC//2}
    ds_read_b128 {vr(dKL[1],4)}, v{dKA} offset:{koff(1)}
    s_mov_b32 s62, 0
    s_waitcnt lgkmcnt(7)
    {hi2b(dS[0], 0)}
    s_nop 15
    s_nop 0
    s_waitcnt lgkmcnt(4)
    {mf16(dS[0], dKL[0], dQA)}
    {mf16(dS[0]+16, dKL[0], dQB)}
    s_nop 7
    s_nop 3""")

def dstep(a, t):
    C, N = dS[t & 1], dS[(t + 1) & 1]
    def x(i): a(f"v_exp_f32 v{C+i}, v{C+i}")
    def k(i):
        if i < 0: a(f"v_cvt_pk_bf16_f32 v{dP+15}, v{N+30}, v{N+31}")
        else: a(f"v_cvt_pk_bf16_f32 v{dP+i}, v{C+2*i}, v{C+2*i+1}")
    def g(*jj):
        for j in jj: x(2*j); x(2*j+1); k(j-1)
    Vp, Vc = dV[(t + 1) & 1], dV[t & 1]
    KLc, KLn = dKL[(t + 1) & 1], dKL[t & 1]
    g(0, 1)
    a(mf16(dOB, Vp + 4, dP + 12)); a("s_waitcnt lgkmcnt(0)")
    g(2); x(6)
    a(hi2b(N, t + 1))
    x(7); k(2); g(4, 5, 6)
    a(mf16(dOA, Vc, dP)); a(f"ds_read_b128 {vr(Vp,4)}, v{dVA} offset:{voff(t+1)}")
    g(7, 8)
    a(mf16(N, KLc, dQA)); a(f"ds_read_b128 {vr(Vp+4,4)}, v{dVA} offset:{voff(t+1)+VREC//2}")
    g(9, 10)
    a(mf16(dOA, Vc + 4, dP + 4)); a(f"ds_read_b128 {vr(KLn,4)}, v{dKA} offset:{koff(t+2)}")
    g(11, 12, 13)
    a(mf16(dOB, Vc, dP + 8))
    if t & 3 == 1: a(f"ds_read_b64 {vr(dKH[((t>>2)+1)&1],2)}, v{dHA} offset:{((t>>2)+1)*BLK}")
    if t == 7: a("s_add_u32 s62, s62, 1")
    g(14); x(30)
    a(mf16(N + 16, KLc, dQB))
    if t == 7: a("s_cmp_lt_u32 s62, 4")
    x(31); k(14)

def attn_loop(a):
    a(".p2align 6\nL_att:")
    for t in range(8):
        dstep(a, t)
        if t == 4:
            a("""s_cmp_lt_u32 s62, 3
            s_cbranch_scc1 L_hook
            L_hookret:""")
    a(f"""v_add_u32 v{dKA}, {2*BLK}, v{dKA}
    v_add_u32 v{dVA}, {2*BLK}, v{dVA}
    v_add_u32 v{dHA}, {2*BLK}, v{dHA}
    s_cbranch_scc1 L_att
    v_cvt_pk_bf16_f32 v{dP+15}, v{dS[1]+30}, v{dS[1]+31}
    s_mul_i32 s34, {sW}, 2560
    s_add_u32 s35, s34, {OX1 - 5*2560}
    s_add_u32 s34, s34, {OX0}
    s_cmp_ge_u32 {sW}, 5
    {mf16(dOB, dV[1]+4, dP+12)}
    s_cselect_b32 s34, s35, s34
    v_add_u32 v12, s34, v{vL16}
    s_xor_b32 s33, {sW}, 4
    s_mul_i32 s34, s33, 2560
    s_add_u32 s35, s34, {OX1 - 5*2560}
    s_add_u32 s34, s34, {OX0}
    s_cmp_ge_u32 s33, 5
    s_cselect_b32 s34, s35, s34
    v_add_u32 v13, s34, v{vL16}""")

def hooks(a):
    a(f"""L_hook:
    s_cmp_eq_u32 s62, 1
    s_cbranch_scc1 L_hookB
    s_cmp_eq_u32 s62, 2
    s_cbranch_scc1 L_hookC
    s_cmp_lt_u32 {sW}, 5
    s_cbranch_scc1 L_hookA1""")
    poll_issue(a)
    poll_wait(a, "b", 0)
    a("L_hookA1:\ns_waitcnt vmcnt(0)")
    kv_write(a, 5, 10)
    a("s_waitcnt lgkmcnt(0)\ns_barrier")
    kv_issue(a, 10, 19)
    a("s_branch L_hookret\nL_hookB:\ns_waitcnt vmcnt(0)")
    kv_write(a, 10, 19)
    a("s_waitcnt lgkmcnt(0)\ns_barrier\ns_branch L_hookret\nL_hookC:\ns_barrier")
    G.issue_wo(a)
    a("s_branch L_hookret")

def o_combine(a):
    a(f"""s_cmp_lg_u32 {sTH}, 0
    s_cbranch_scc1 L_ocB
    s_nop 4""")
    def body(keep, send):
        a(f"""ds_write_b128 v12, {vr(send,4)}
        ds_write_b128 v12, {vr(send+4,4)} offset:1024
        s_mov_b32 exec_hi, 0
        ds_write_b128 v12, {vr(send+8,4)} offset:2048
        s_mov_b32 exec_hi, -1
        s_waitcnt lgkmcnt(0)
        s_barrier
        ds_read_b128 v[32:35], v13
        ds_read_b128 v[36:39], v13 offset:1024
        ds_read_b128 v[40:43], v13 offset:2048""")
        o_addr(a)
        a("s_waitcnt lgkmcnt(0)")
        for i in range(11): a(f"v_add_f32 v{16+i}, v{keep+i}, v{32+i}")
    body(dOA, dOB)
    a("s_branch L_ocj\nL_ocB:")
    body(dOB, dOA)
    a("L_ocj:")

def o_addr(a):
    a(f"""s_mul_i32 s59, {sRB}, 73728
    s_mul_i32 s35, {sTH}, 36864
    s_add_u32 s59, s59, s35
    s_mul_i32 s35, {sG}, 144
    s_add_u32 s59, s59, s35
    s_mul_i32 s35, {sHH}, 36
    s_add_u32 s59, s59, s35
    v_and_b32 v14, 31, v{vLANE}
    v_mul_u32_u24 v14, 1152, v14
    v_lshrrev_b32 v15, 5, v{vLANE}
    v_lshl_add_u32 v14, v15, 4, v14""")

def o_store(a):
    a(f"""L_onorm:
    v_mov_b32 v27, v26
    s_add_u32 s34, s59, {WS_O}
    s_nop 0
    v_permlane32_swap_b32 v26, v27
    s_nop 1
    v_rcp_f32 v27, v26
    s_nop 0""")
    for i in range(10): a(f"v_mul_f32 v{16+i}, v{16+i}, v27")
    for i in range(5): a(f"v_cvt_pk_bf16_f32 v{32+i}, v{16+2*i}, v{17+2*i}")
    a(f"""buffer_store_dwordx4 v[32:35], v14, {SWS}, s34 offen {SC}
    s_mov_b32 exec_hi, 0
    buffer_store_dword v36, v14, {SWS}, s34 offen offset:32 {SC}
    s_mov_b32 exec_hi, -1""")

def gen():
    G.BLK = BLK
    a = Asm()
    G.kernel_head(a, NAME + "_kernel")
    prologue(a)
    a(f"s_cmp_lt_u32 {sW}, 2\ns_cbranch_scc1 L_kvw_issue")
    a(f"s_lshl_b32 s52, {sW}, 3\ns_add_u32 s52, s52, 32")
    G.issue_wkv(a, 8); G.issue_x(a); G.issue_wq(a)
    G.proj_addrs(a); attn_setup(a)
    a("s_waitcnt vmcnt(16)\ns_barrier")
    stamp(a, 1)
    a("s_branch L_stage0\nL_kvw_issue:")
    a(f"s_mul_i32 s52, {sW}, 24")
    G.issue_wkv(a, 24); G.issue_x(a)
    G.proj_addrs(a); attn_setup(a)
    a("s_waitcnt vmcnt(0)\ns_barrier")
    stamp(a, 1)
    kvp(a)
    a("L_stage0:")
    a(f"""v_mov_b32 v12, 0x{TAGC >> 32:x}
    v_add_co_u32 v{vTAG}, vcc, 0x{TAGC & 0xffffffff:x}, v{vTAG}
    s_nop 1
    v_addc_co_u32 v{vTAG+1}, vcc, v12, v{vTAG+1}, vcc""")
    for st in range(4):
        if st < 3: a(f"s_waitcnt vmcnt({12-4*st})")
        else:
            a(f"s_waitcnt vmcnt(0)\ns_cmp_lt_u32 {sW}, 2\ns_cbranch_scc1 L_nowt")
            G.write_wq_tail(a)
            a("L_nowt:\ns_waitcnt lgkmcnt(0)")
        a("s_barrier")
        if st == 3:
            stamp(a, 2)
            poll_issue(a)
        G.proj_stage(a, 9 * st, 9 * st + 9)
        if st == 0:
            a(f"""s_cmp_ge_u32 {sW}, 2
            s_cbranch_scc1 L_noflag
            s_and_b32 s34, s2, 7
            s_lshl_b32 s34, s34, 10
            s_lshr_b32 s35, s2, 3
            s_lshl_b32 s35, s35, 5
            s_add_u32 s34, s34, s35
            s_lshl_b32 s35, {sW}, 3
            s_add_u32 s34, s34, s35
            s_add_u32 s34, s34, {WS_FLAG}
            v_mov_b32 v12, 0
            s_waitcnt vmcnt(0)
            s_mov_b64 exec, 1
            buffer_store_dwordx2 {vr(vTAG,2)}, v12, {SWS}, s34 offen {SC}
            s_mov_b64 exec, -1
            L_noflag:""")
    a("s_nop 7\ns_nop 3")
    q_finish(a)
    a(f"s_cmp_ge_u32 {sW}, 5\ns_cbranch_scc1 L_pollok_a")
    poll_wait(a, "a", 0)
    stamp(a, 3)
    a("s_waitcnt vmcnt(0)\ns_barrier")
    kv_issue(a, 0, 10)
    q_write(a)
    a("s_waitcnt vmcnt(5)")
    kv_write(a, 0, 5)
    a("s_waitcnt lgkmcnt(0)\ns_barrier")
    stamp(a, 4); cstamp(a, 8)
    attn_pre(a)
    attn_loop(a)
    stamp(a, 5); cstamp(a, 9)
    o_combine(a)
    o_store(a)
    a(f"""s_lshl_b32 s34, {sRB}, 10
    s_add_u32 s57, s34, {WS_OFLAG}
    s_lshl_b32 s35, {sG}, 7
    s_add_u32 s34, s57, s35
    v_and_b32 v{vPOLL+4}, 7, v{vLANE}
    v_lshlrev_b32 v{vPOLL+4}, 7, v{vPOLL+4}
    v_mov_b32 v12, 0
    s_waitcnt vmcnt(0)
    s_barrier
    s_cmp_lg_u32 {sW}, 0
    s_cbranch_scc1 L_noof
    s_mov_b64 exec, 1
    buffer_store_dwordx2 {vr(vTAG,2)}, v12, {SWS}, s34 offen {SC}
    s_cmp_lg_u32 s2, 0
    s_cbranch_scc1 L_noep
    v_mov_b32 v12, {WS_EPOCH}
    buffer_store_dwordx2 {vr(vTAG,2)}, v12, {SWS}, 0 offen {SC}
    L_noep:
    s_mov_b64 exec, -1
    L_noof:""")
    stamp(a, 6)
    a(f"""s_mov_b32 s56, 0
    L_opoll:
    buffer_load_dwordx2 {vr(vPOLL,2)}, v{vPOLL+4}, {SWS}, s57 offen {SC}
    s_waitcnt vmcnt(0)
    v_cmp_ne_u64 vcc, {vr(vPOLL,2)}, {vr(vTAG,2)}
    s_cbranch_vccz L_opollok
    s_add_u32 s56, s56, 1
    s_bitcmp1_b32 s56, {SPIN_BITS}
    s_cbranch_scc1 L_opollok
    s_sleep 1
    s_branch L_opoll
    L_opollok:""")
    stamp(a, 10)
    G.issue_o(a, SC)
    G.STO = 100
    out_proj(a)
    G.finish(a, "f", 0, 12)
    hooks(a)
    hdr = G.HEADER + f"; @launch grid=(256,1,1) block=(512,1,1) lds={LDS_TOTAL}\n"
    return (hdr + '.amdgcn_target "amdgcn-amd-amdhsa--gfx950"\n.text\n' + a.text() + '.section .rodata,"a"\n' + G.descriptor(NAME + "_kernel"))

def out_proj(a):
    for st in range(3):
        a(f"s_waitcnt vmcnt({6-3*st})")
        for c in range(3 * st, 3 * st + 3):
            a(f"ds_write_b128 v113, {vr(G.vOST+4*c,4)} offset:{c*4096}")
        a("s_waitcnt lgkmcnt(0)\ns_barrier")
        if st == 0: stamp(a, 11)
        G.proj_stage(a, 12 * st, 12 * st + 12)
    a(f"""s_nop 7
    s_nop 1
    s_bitcmp1_b32 {sHH}, 0
    s_cbranch_scc1 L_oodd""")
    def body(lo, hi):
        for i in range(4): a(f"v_cvt_pk_bf16_f32 v{32+i}, v{vD+lo+2*i}, v{vD+lo+2*i+1}")
        a(f"v_cvt_pk_bf16_f32 v36, v{vD+hi}, v{vD+hi+1}")
    body(0, 8)
    a("s_branch L_ojoin\nL_oodd:")
    body(2, 14)
    a(f"""L_ojoin:
    buffer_store_dwordx4 v[32:35], v14, {SOUT}, s59 offen
    s_mov_b32 exec_hi, 0
    buffer_store_dword v36, v14, {SOUT}, s59 offen offset:32
    s_mov_b32 exec_hi, -1""")

def kvp(a):
    b = Asm(); G.kv_proj(b, "f", SC)
    import re
    txt = b.text()
    def remap(m):
        n = int(m.group(1)); return f"v{n + 48}" if n >= 128 else m.group(0)
    def remap2(m):
        lo, hi = int(m.group(1)), int(m.group(2))
        return f"v[{lo+48}:{hi+48}]" if lo >= 128 else m.group(0)
    txt = re.sub(r"v\[(\d+):(\d+)\]", remap2, txt)
    txt = re.sub(r"\bv(\d+)\b", remap, txt)
    i = txt.index("L_kvV_f:")
    head, tail = txt[:i], txt[i:]
    j = tail.index("; V :")
    t2 = tail[j:]
    t2 = t2.replace("s56, 1152", "s56, 1216").replace("s54, 576", "s54, 608").replace("v13, 288, v13", "v13, 304, v13")
    t2 = t2.replace("0x00030003", "0x00070007")
    t2 = t2.replace("    s_mov_b64 exec, s[32:33]\n", f"""    s_cmp_eq_u32 {sW}, 0
    s_cbranch_scc1 L_kvnoone
    s_mov_b32 exec_lo, 0x00040004
    s_mov_b32 exec_hi, 0x00040004
    v_mov_b32 v220, 0x3f803f80
    v_mov_b32 v221, 0x3f803f80
L_kvnoone:
    s_mov_b64 exec, s[32:33]
""")
    a.l.append((head + tail[:j] + t2).rstrip("\n"))

if __name__ == "__main__":
    if "--stamps" in sys.argv:
        G.STAMPS = True; sys.argv.remove("--stamps")
    out = sys.argv[1] if len(sys.argv) > 1 else f"cdna_kernels/{NAME}.s"
    open(out, "w").write(gen())
    print("wrote", out)
```

```python
import sys, math, struct, re
import gen as G
from gen import Asm, vr, set_exec, MASK54, MASKKV, stamp, cstamp
from gen import sW, sRB, sG, sHH, sTH, SX, SWQ, SWKV, SWO, SOUT, SWS, vLANE, vXSRC, vWSRC, vKVSRC, vL16, vXA, vWA, vD
from gen import WIMG, LDS_TOTAL, WS_FLAG, WS_OFLAG, WS_O, NAME

VREC = 1216
PAIR = 304
WKV = 216 * PAIR
XIMG = WKV + 576 * 40
G.WKV, G.XIMG = WKV, XIMG
MASK57 = sum(1 << l for l in range(57) if l % 19 != 18)
vWSRCQ = 175
BLK = 19456
KVSZ = 8 * BLK
QX = 155648
WS_EPOCH = 0x3E000
OX0, OX1 = 83968, 155648
OIMG = 85248
OWG = 9216
WS_SIZE = WS_O + 256 * OWG
SC = "sc1"
SPIN_BITS = 18
TAGC = 0x9E3779B97F4A7C15
D = 5
vPA = 32
dS = (16, 48); dP = 80; dOA, dOB = 96, 112; dQA, dQB, dQH = 128, 132, 136
dKL = (140, 168); dKH = (144, 146); dV = (148, 156); dKA, dVA, dHA = 164, 165, 166
vTAG = 172
vWH = 174
vPOLL = 176
vWST = 216
vOST = 184
OPT = dict(prio=1)

_stamp0 = stamp
def stamp(a, j, tail=False, front=False):
    if OPT.get("tail"):
        if front or (j in (1, 10, 2, 3) and not tail): return
    elif OPT.get("front"):
        if tail or (j in (12, 13, 6, 11) and not front): return
    elif tail or front: return
    _stamp0(a, j)
def koff(u): return (u >> 2) * BLK + (u & 3) * 1024
def voff(u): return (u >> 2) * BLK + (u & 3) * VREC
def mf16(d, A, B, z=False): return f"v_mfma_f32_32x32x16_bf16 {vr(d,16)}, {vr(A,4)}, {vr(B,4)}, {'0' if z else vr(d,16)}"
def hi2b(N, u): return f"v_mfma_f32_32x32x4_2b_bf16 {vr(N,32)}, {vr(dKH[(u>>2)&1],2)}, {vr(dQH+2*((u>>1)&1),2)}, 0 cbsz:1 abid:{u&1}"

def prologue(a):
    if G.STAMPS:
        for j in range(14): a(f"s_mov_b32 s{64+2*j}, 0")
    stamp(a, 0)
    a(f"""s_cmp_ge_u32 s2, 256
    s_cbranch_scc1 L_exit_f
    s_load_dwordx16 s[36:51], s[0:1], 0
    v_lshrrev_b32 v12, 6, v0
    v_and_b32 v{vLANE}, 63, v0
    v_readfirstlane_b32 {sW}, v12
    s_and_b32 {sRB}, s2, 7
    s_lshl_b32 {sRB}, {sRB}, 2
    s_lshr_b32 {sG}, s2, 6
    s_add_u32 {sRB}, {sRB}, {sG}
    s_bfe_u32 {sG}, s2, 0x30003
    s_and_b32 {sHH}, {sW}, 3
    s_lshr_b32 {sTH}, {sW}, 2
    v_mul_u32_u24 v12, 205, v{vLANE}
    v_lshrrev_b32 v12, 11, v12
    v_sub_u32 v12, v{vLANE}, v12
    v_lshlrev_b32 v{vKVSRC}, 2, v12
    v_lshlrev_b32 v{vL16}, 4, v{vLANE}
    s_and_b32 s60, {sG}, 6
    s_add_u32 s60, s60, {sW}
    s_and_b32 s60, s60, 7
    s_and_b32 s61, s60, 3
    s_lshl_b32 s34, s61, 2
    v_lshrrev_b32 v12, 4, v{vLANE}
    v_add_u32 v12, s34, v12
    v_xor_b32 v12, v12, v{vLANE}
    v_and_b32 v12, 7, v12
    v_lshrrev_b32 v13, 3, v{vLANE}
    v_mul_u32_u24 v13, 1152, v13
    v_lshl_add_u32 v{vXSRC}, v12, 4, v13
    v_mul_u32_u24 v12, 57, v{vLANE}
    v_lshrrev_b32 v12, 9, v12
    v_mul_u32_u24 v12, 1008, v12
    v_add_u32 v{vWSRC}, v12, v{vL16}
    v_mul_u32_u24 v12, 27, v{vLANE}
    v_lshrrev_b32 v12, 9, v12
    v_mul_u32_u24 v13, 19, v12
    v_sub_u32 v13, v{vLANE}, v13
    v_mul_u32_u24 v12, 2304, v12
    v_lshl_add_u32 v12, v13, 4, v12
    v_cmp_le_u32 vcc, 9, v13
    v_add_u32 v13, 1008, v12
    v_mov_b32 v14, {WS_EPOCH}
    v_cndmask_b32 v{vWSRCQ}, v12, v13, vcc
    s_mul_i32 s62, {sRB}, 73728
    s_mul_i32 s35, s60, 9216
    s_add_u32 s62, s62, s35
    s_lshr_b32 s63, s60, 2
    s_mul_i32 s63, s63, 36864
    s_lshl_b32 s35, s61, 10
    s_add_u32 s63, s63, s35
    s_add_u32 s63, s63, {XIMG}
    s_mov_b32 s18, {576*36}
    s_mov_b32 s19, 0x20000
    s_mov_b32 s30, {(16 << 20) if G.STAMPS else WS_SIZE}
    s_mov_b32 s31, 0x20000
    s_mov_b32 s10, {2048*1152}
    s_mov_b32 s11, 0x20000
    s_mov_b32 s14, {576*1152}
    s_mov_b32 s15, 0x20000
    s_mov_b32 s22, {576*1152}
    s_mov_b32 s23, 0x20000
    s_mov_b32 s26, {2048*1152}
    s_mov_b32 s27, 0x20000
    s_bitcmp1_b32 {sG}, 0
    s_waitcnt lgkmcnt(0)
    s_cselect_b32 s16, s42, s40
    s_cselect_b32 s17, s43, s41
    s_mov_b32 s8, s36
    s_mov_b32 s9, s37
    s_mov_b32 s28, s50
    s_mov_b32 s29, s51
    s_mov_b32 s12, s38
    s_mov_b32 s13, s39
    s_mov_b32 s20, s44
    s_mov_b32 s21, s45
    s_mov_b32 s24, s46
    s_mov_b32 s25, s47""")
    stamp(a, 12, front=True)

def x_loads(a, c0, c1):
    for c in range(c0, c1):
        a(f"s_add_u32 m0, s63, {3968*c}\ns_nop 0\nbuffer_load_dwordx4 v{vXSRC}, {SX}, s62 offen offset:{128*c} lds")

def front_issue_kv(a):
    a(f"buffer_load_dwordx2 {vr(vTAG,2)}, v14, {SWS}, 0 offen {SC}")
    x_loads(a, 0, 9)
    a(f"s_mul_i32 s52, {sW}, 6")
    G.issue_wkv(a, 6)
    stamp(a, 13, front=True)
    a(f"""s_lshl_b32 s54, {sRB}, 3
    s_add_u32 s54, s54, {sG}
    s_mul_i32 s54, s54, {OWG}
    s_lshl_b32 s35, {sW}, 12
    s_add_u32 s54, s54, s35
    s_add_u32 s54, s54, {WS_O}
    s_add_u32 s55, s54, 4096""")
    for i in range(4): a(f"v_mov_b32 v{16+i}, -1")
    for i in range(4): a(f"buffer_store_dwordx4 v[16:19], v{vL16}, {SWS}, s54 offen offset:{1024*i} {SC}")
    a(f"buffer_store_dwordx4 v[16:19], v{vL16}, {SWS}, s55 offen {SC}")

XC = [(0, 3), (3, 5), (5, 7), (7, 9)]
def stage_load_list(st):
    out = []
    for c in range(*XC[st]):
        out.append(f"s_add_u32 m0, s63, {3968*c}\ns_nop 0\nbuffer_load_dwordx4 v{vXSRC}, {SX}, s62 offen offset:{128*c} lds")
    for i in range(4 * st, 4 * st + 4):
        pre = f"s_add_u32 s61, s60, {36*1152*i}\ns_mov_b64 exec, s[92:93]\n"
        if st < 3: out.append(f"s_add_u32 m0, s94, {18*PAIR*i}\n{pre}buffer_load_dwordx4 v{vWSRCQ}, {SWQ}, s61 offen lds\ns_mov_b64 exec, -1")
        else: out.append(f"{pre}buffer_load_dwordx4 {vr(vWST+4*(i-12),4)}, v{vWSRCQ}, {SWQ}, s61 offen\ns_mov_b64 exec, -1")
    return out

def front_issue_q(a):
    a(f"s_mul_i32 s52, {sW}, 14\ns_sub_u32 s52, s52, 16")
    G.issue_wkv(a, 14)
    a(f"""buffer_load_dwordx2 {vr(vTAG,2)}, v14, {SWS}, 0 offen {SC}
    s_sub_u32 s33, {sW}, 2
    s_mul_i32 s60, s33, {6*1152}
    s_mul_i32 s35, {sG}, 144
    s_add_u32 s60, s60, s35
    s_mul_i32 s94, s33, {3*PAIR}
    s_mov_b32 s92, 0x{MASK57 & 0xffffffff:x}
    s_mov_b32 s93, 0x{MASK57 >> 32:x}""")
    stamp(a, 13, front=True)
    for t in stage_load_list(0): a(t)
    proj_addrs(a)
    a("s_waitcnt vmcnt(7)\ns_barrier"); stamp(a, 1)
    for t in stage_load_list(1): a(t)

def write_wq_tail(a):
    a(f"""s_sub_u32 s33, {sW}, 2
    s_mul_i32 s35, s33, {3*PAIR}
    s_add_u32 s35, s35, {WIMG + 216*PAIR}
    v_add_u32 v12, s35, v{vL16}""")
    set_exec(a, MASK57)
    for i in range(4): a(f"ds_write_b128 v12, {vr(vWST+4*i,4)} offset:{i*18*PAIR}")
    a("s_mov_b64 exec, -1")

def proj(a, reads, gates, after=None):
    def rd(s):
        if s in gates: gates[s]()
        reads(s, vPA + 8 * (s % D))
    for s in range(D): rd(s)
    for s in range(36):
        a(f"s_waitcnt lgkmcnt({3*min(35-s, D-1)})")
        b = vPA + 8 * (s % D)
        a(f"v_mfma_f32_32x32x16_bf16 {vr(vD,16)}, {vr(b,4)}, {vr(b+4,4)}, {'0' if s == 0 else vr(vD,16)}")
        if s + D < 36: rd(s + D)
        if after and s in after: after[s]()

def q_reads(a):
    def f(s, b):
        wa, off = (vWA, s * 8 * PAIR) if s < 18 else (vWA + 1, (s - 18) * 8 * PAIR)
        a(f"""ds_read_b64_tr_b16 {vr(b,2)}, v{wa} offset:{off}
        ds_read_b64_tr_b16 {vr(b+2,2)}, v{wa} offset:{off+2*PAIR}
        ds_read_b128 {vr(b+4,4)}, v{vXA+(s&3)} offset:{(s>>2)*4096}""")
    return f
def o_reads(a):
    def f(s, b):
        if s < 16: wa, off, d2 = vWA, s * 2592, 576
        elif s < 32: wa, off, d2 = vWA + 1, (s - 16) * 2592, 576
        else: wa, off, d2 = vWH, (s - 32) * 20736 - (0 if s < 35 else 0), 5184
        if off + d2 > 65535: wa, off = vWH + 1, off - 41472
        a(f"""ds_read_b64_tr_b16 {vr(b,2)}, v{wa} offset:{off}
        ds_read_b64_tr_b16 {vr(b+2,2)}, v{wa} offset:{off+d2}
        ds_read_b128 {vr(b+4,4)}, v{vXA} offset:{s*1024}""")
    return f

def proj_addrs(a):
    b = Asm(); G.proj_addrs(b)
    t = b.text()
    old = t[t.index(f"    v_lshl_add_u32 v14, v15, 3, v14"):t.index(f"    v_add3_u32 v{vWA}")]
    new = f"""    v_lshrrev_b32 v12, 1, v14
    v_lshl_add_u32 v12, v15, 2, v12
    v_mul_u32_u24 v12, {PAIR}, v12
    v_and_b32 v14, 1, v14
    v_mul_u32_u24 v14, 144, v14
    v_add_u32 v14, v14, v12
"""
    t = t.replace(old, new).replace(f"{18*2304}", f"{18*8*PAIR}")
    a.l.append(t.rstrip("\n"))

def attn_setup(a):
    a(f"""v_mov_b32 v{dQH+1}, 0
    v_mov_b32 v{dQH+2}, 0
    v_and_b32 v12, 31, v{vLANE}
    v_lshrrev_b32 v14, 5, v{vLANE}
    v_mul_u32_u24 v14, {VREC//4}, v14
    v_lshl_add_u32 v14, v12, 4, v14
    v_cmp_lt_u32 vcc, 18, v12
    s_mul_i32 s34, {sTH}, {4*VREC}
    s_add_u32 s34, s34, 9216
    v_add_u32 v{dVA}, s34, v14
    v_mov_b32 v13, 0x40000
    v_cndmask_b32 v{dVA}, v{dVA}, v13, vcc
    s_lshl_b32 s34, {sTH}, 12
    v_add_u32 v{dKA}, s34, v{vL16}
    s_lshl_b32 s34, {sTH}, 3
    s_add_u32 s34, s34, 8192
    v_add_u32 v{dHA}, s34, v{vL16}
    s_lshr_b32 s34, {sRB}, 2
    s_add_u32 s34, s34, {sW}
    s_add_u32 s34, s34, 1
    s_and_b32 s34, s34, 7
    s_mul_i32 s58, s34, {BLK}
    s_lshl_b32 s34, s34, 10
    s_add_u32 s57, s34, {WS_FLAG}
    s_mul_i32 s59, {sW}, {BLK}""")

def poll_issue(a):
    a(f"""v_and_b32 v{vPOLL+4}, 31, v{vLANE}
    v_lshlrev_b32 v{vPOLL+4}, 5, v{vPOLL+4}
    buffer_load_dwordx4 {vr(vPOLL,4)}, v{vPOLL+4}, {SWS}, s57 offen {SC}""")
def poll_wait(a, tag):
    a(f"""s_mov_b32 s56, 0
    s_waitcnt vmcnt(0)
    L_poll_{tag}:
    v_cmp_ne_u64 vcc, {vr(vPOLL,2)}, {vr(vTAG,2)}
    v_cmp_ne_u64 s[32:33], {vr(vPOLL+2,2)}, {vr(vTAG,2)}
    s_or_b64 vcc, vcc, s[32:33]
    s_cbranch_vccz L_pollok_{tag}
    s_add_u32 s56, s56, 1
    s_bitcmp1_b32 s56, {SPIN_BITS}
    s_cbranch_scc1 L_pollok_{tag}
    buffer_load_dwordx4 {vr(vPOLL,4)}, v{vPOLL+4}, {SWS}, s57 offen {SC}
    s_waitcnt vmcnt(0)
    s_branch L_poll_{tag}
    L_pollok_{tag}:""")
def kv_dma(a, r0, r1):
    out = []
    for r in range(r0, r1):
        if r % 4 == 0 or r == r0:
            out.append(f"s_add_u32 m0, s59, {(r//4)*4096}\ns_add_u32 s55, s58, {(r//4)*4096}")
        if r == 18: out.append("s_mov_b32 exec_hi, 0")
        out.append(f"buffer_load_dwordx4 v{vL16}, {SWS}, s55 offen offset:{(r%4)*1024} {SC} lds")
        if r == 18: out.append("s_mov_b32 exec_hi, -1")
    a("\n".join(out))

def q_finish(a):
    a(f"""s_mov_b32 s34, 0x{G.QSCALE:x}
    s_bitcmp1_b32 {sHH}, 0
    s_cbranch_scc1 L_qodd""")
    def body(lo, hi):
        for r in list(range(lo, lo + 8)) + [hi, hi + 1]: a(f"v_mul_f32 v{vD+r}, s34, v{vD+r}")
        for i in range(4): a(f"v_cvt_pk_bf16_f32 v{32+i}, v{vD+lo+2*i}, v{vD+lo+2*i+1}")
        a(f"v_cvt_pk_bf16_f32 v36, v{vD+hi}, v{vD+hi+1}")
    body(0, 8)
    a("s_branch L_qjoin\nL_qodd:")
    body(2, 14)
    a("L_qjoin:")
def q_addr(a):
    a(f"""s_lshl_b32 s34, {sW}, 10
    s_add_u32 s34, s34, {QX}
    v_add_u32 v72, s34, v{vL16}
    s_lshr_b32 s34, {sHH}, 1
    s_mul_i32 s34, s34, {BLK - 512}
    s_lshl_b32 s35, {sHH}, 8
    s_add_u32 s34, s34, s35
    s_add_u32 s34, s34, {BLK - 512}
    v_lshl_add_u32 v74, v{vLANE}, 2, s34
    s_lshl_b32 s35, {sTH}, 7
    v_add_u32 v73, s35, v74
    v_xor_b32 v74, s35, v74
    s_xor_b32 s34, {sW}, 4
    s_lshl_b32 s34, s34, 10
    s_add_u32 s34, s34, {QX}
    v_add_u32 v75, s34, v{vL16}""")
def q_write(a):
    a(f"""ds_write_b128 v72, v[32:35]
    s_mov_b32 exec_hi, 0
    ds_write_b32 v73, v36
    s_mov_b32 exec_hi, -1""")

def attn_pre(a):
    a(f"""ds_read_b32 v{dQH}, v74
    ds_read_b64 {vr(dKH[0],2)}, v{dHA}
    ds_read_b128 {vr(dQA,4)}, v72
    ds_read_b128 {vr(dKL[0],4)}, v{dKA}
    ds_read_b128 {vr(dQB,4)}, v75
    ds_read_b32 v{dQH+3}, v74
    ds_read_b128 {vr(dV[0],4)}, v{dVA}
    ds_read_b128 {vr(dV[0]+4,4)}, v{dVA} offset:{VREC//2}
    ds_read_b128 {vr(dKL[1],4)}, v{dKA} offset:{koff(1)}
    s_waitcnt lgkmcnt(7)
    {hi2b(dS[0], 0)}""")

def dstep(a, T, duty):
    t = T & 7
    C, N = dS[t & 1], dS[(t + 1) & 1]
    last = T == 31
    def x(i): a(f"v_exp_f32 v{C+i}, v{C+i}")
    def k(i):
        if i < 0:
            if T: a(f"v_cvt_pk_bf16_f32 v{dP+15}, v{N+30}, v{N+31}")
        else: a(f"v_cvt_pk_bf16_f32 v{dP+i}, v{C+2*i}, v{C+2*i+1}")
    def g(*jj):
        for j in jj: x(2*j); x(2*j+1); k(j-1)
    def du(s):
        if s in duty: a(duty[s])
    Vp, Vc = dV[(t + 1) & 1], dV[t & 1]
    KLc, KLn = dKL[(t + 1) & 1], dKL[t & 1]
    g(0, 1)
    if T: a(mf16(dOB, Vp + 4, dP + 12))
    a("s_waitcnt lgkmcnt(0)")
    g(2); x(6)
    if not last: a(hi2b(N, t + 1))
    du(0)
    x(7); k(2); g(4, 5, 6)
    a(mf16(dOA, Vc, dP, T == 0))
    if not last: a(f"ds_read_b128 {vr(Vp,4)}, v{dVA} offset:{voff(t+1)}")
    g(7); du(1); g(8)
    if not last:
        a(mf16(N, KLc, dQA)); a(f"ds_read_b128 {vr(Vp+4,4)}, v{dVA} offset:{voff(t+1)+VREC//2}")
    g(9); du(2); g(10)
    a(mf16(dOA, Vc + 4, dP + 4))
    if T < 30: a(f"ds_read_b128 {vr(KLn,4)}, v{dKA} offset:{koff(t+2)}")
    g(11, 12); du(3); g(13)
    a(mf16(dOB, Vc, dP + 8, T == 0))
    if t & 3 == 1 and T < 28: a(f"ds_read_b64 {vr(dKH[((t>>2)+1)&1],2)}, v{dHA} offset:{((t>>2)+1)*BLK}")
    g(14); x(30)
    if not last: a(mf16(N + 16, KLc, dQB))
    x(31); k(14)
    if t == 7 and not last:
        for r in (dKA, dVA, dHA): a(f"v_add_u32 v{r}, {2*BLK}, v{r}")

def attention(a):
    duties = {T: {} for T in range(32)}
    groups = [(0, 4), (4, 8), (8, 12), (12, 16), (16, 19)]
    for i, (r0, r1) in enumerate(groups):
        b = Asm(); b(f"s_cbranch_vccnz L_nd{i}"); kv_dma(b, r0, r1); b(f"L_nd{i}:")
        duties[i // 2][1 + 2 * (i % 2)] = b.text()
    for i in range(11):
        txt = f"s_add_u32 m0, s59, {56*144*i}\ns_add_u32 s58, s58, {56*1152 if i else 0}\nbuffer_load_dwordx4 v{vWSRC}, {SWO}, s58 offen lds"
        if i == 10: txt = f"s_cmp_ge_u32 {sW}, 3\ns_cbranch_scc1 L_nwo\n{txt}\nL_nwo:"
        duties[21 + i * 2 // 3][1 + (i * 2 % 3)] = txt
    for T in range(32):
        if OPT["prio"] == 1 and T % 8 == 0: a(f"s_setprio {3 - T // 8}")
        if OPT["prio"] == 2:
            if T in (0, 5, 21): a(f"s_cmp_eq_u32 {sTH}, 0\ns_cbranch_scc1 L_pr{T}\ns_setprio 1\nL_pr{T}:")
            if T in (4, OPT.get("d1", 18), OPT.get("d2", 30)): a("s_setprio 0")
        dstep(a, T, duties[T])
        if T == 4: a("s_waitcnt vmcnt(0)\ns_barrier")
        if T == 20:
            a(f"""s_mul_i32 s58, {sW}, {7*1152}
            s_mul_i32 s35, {sG}, 144
            s_add_u32 s58, s58, s35
            s_mul_i32 s59, {sW}, {7*144}
            s_barrier""")
    a(f"""v_cvt_pk_bf16_f32 v{dP+15}, v{dS[1]+30}, v{dS[1]+31}
    s_mul_i32 s34, {sW}, 2560
    s_add_u32 s35, s34, {OX1 - 5*2560}
    s_add_u32 s34, s34, {OX0}
    s_cmp_ge_u32 {sW}, 5
    {mf16(dOB, dV[1]+4, dP+12)}
    s_cselect_b32 s34, s35, s34
    v_add_u32 v12, s34, v{vL16}
    s_xor_b32 s33, {sW}, 4
    s_mul_i32 s34, s33, 2560
    s_add_u32 s35, s34, {OX1 - 5*2560}
    s_add_u32 s34, s34, {OX0}
    s_cmp_ge_u32 s33, 5
    s_cselect_b32 s34, s35, s34
    v_add_u32 v13, s34, v{vL16}""")

def o_combine(a):
    a(f"""v_mov_b32 v40, 0
    v_mov_b32 v41, 0
    v_mov_b32 v42, 0
    s_nop 3""")
    def body(keep, send):
        a(f"""ds_write_b128 v12, {vr(send,4)}
        ds_write_b128 v12, {vr(send+4,4)} offset:1024
        s_mov_b32 exec_hi, 0
        ds_write_b128 v12, {vr(send+8,4)} offset:2048
        s_mov_b32 exec_hi, -1
        s_waitcnt vmcnt(0) lgkmcnt(0)
        s_barrier
        ds_read_b128 v[32:35], v13
        ds_read_b128 v[36:39], v13 offset:1024
        s_mov_b32 exec_hi, 0
        ds_read_b128 v[40:43], v13 offset:2048
        s_mov_b32 exec_hi, -1""")
        a(f"""s_lshl_b32 s54, {sRB}, 3
        s_mul_i32 s54, s54, {OWG}
        s_add_u32 s54, s54, {WS_O}
        s_mul_i32 s55, {sG}, {OWG}
        s_add_u32 s55, s55, s54
        s_lshl_b32 s34, {sW}, 10
        s_add_u32 s52, s34, s54
        s_add_u32 s34, s34, s55
        s_lshl_b32 s35, {sTH}, 9
        s_add_u32 s35, s35, s55
        s_lshl_b32 s33, {sHH}, 2
        s_add_u32 s35, s35, s33
        s_add_u32 s35, s35, 8192
        s_mul_i32 s53, {sW}, {OWG}
        s_add_u32 s53, s53, s54
        s_add_u32 s53, s53, 8192
        s_waitcnt lgkmcnt(0)""")
        for i in (10, 0, 1, 2, 3, 4, 5, 6, 7, 8, 9): a(f"v_add_f32 v{16+i}, v{keep+i}, v{32+i}")
    body(dOA, dOB)

def o_store(a):
    a(f"""v_mov_b32 v27, v26
    v_max3_f32 v28, |v16|, |v17|, |v18|
    v_max3_f32 v29, |v19|, |v20|, |v21|
    v_permlane32_swap_b32 v26, v27
    v_max3_f32 v28, |v22|, |v23|, v28
    v_max3_f32 v29, |v24|, |v25|, v29
    v_add_f32 v30, v16, v17
    v_cmp_le_f32 vcc, 0x2b800000, v26
    v_cmp_ge_f32 s[32:33], s[90:91], s[90:91]""" if False else f"""v_mov_b32 v27, v26
    v_add_f32 v28, |v16|, |v17|
    v_add_f32 v29, |v18|, |v19|
    v_permlane32_swap_b32 v26, v27
    v_add_f32 v28, |v20|, v28
    v_add_f32 v29, |v21|, v29
    v_rcp_f32 v27, v26
    v_add_f32 v28, |v22|, v28
    v_add_f32 v29, |v23|, v29
    v_add_f32 v28, |v24|, v28
    v_add_f32 v29, |v25|, v29
    v_cmp_nle_f32 vcc, 0x2b800000, v26
    v_add_f32 v28, v29, v28
    s_mov_b64 s[32:33], vcc
    v_cmp_nge_f32 vcc, 0x58800000, v26
    s_or_b64 s[32:33], s[32:33], vcc
    v_cmp_nge_f32 vcc, 0x7e800000, v28
    s_or_b64 vcc, s[32:33], vcc
    s_cbranch_vccnz L_slow
    L_onorm:""")
    for i in range(10): a(f"v_mul_f32 v{16+i}, v{16+i}, v27")
    for i in range(5): a(f"v_cvt_pk_bf16_f32 v{32+i}, v{16+2*i}, v{17+2*i}")
    for i in range(5): a(f"v_min_u32 v{32+i}, -2, v{32+i}")
    stamp(a, 1, True)
    a(f"""buffer_store_dwordx4 v[32:35], v{vL16}, {SWS}, s34 offen {SC}""")
    stamp(a, 10, True)
    a(f"""s_mov_b32 exec_hi, 0
    buffer_store_dword v36, v{vL16}, {SWS}, s35 offen {SC}
    s_mov_b32 exec_hi, -1""")

vAF = 32
vBF = 220
vT = 2
def o_loads(a, g0, g1, hi):
    for gg in range(g0, g1):
        a(f"s_add_u32 s33, s52, {gg*OWG}\nbuffer_load_dwordx4 {vr(vOST+4*gg,4)}, v{vL16}, {SWS}, s33 offen {SC}")
    if hi: a(f"buffer_load_dwordx4 {vr(vOST+32,4)}, v{vL16}, {SWS}, s53 offen {SC}")

def tail_addr(a):
    a(f"""s_mul_i32 s34, {sTH}, 36864
    s_add_u32 s34, s34, {OIMG}
    s_lshl_b32 s35, {sHH}, 10
    s_add_u32 s35, s35, s34
    v_add_u32 v6, s35, v{vL16}
    s_lshl_b32 s35, {sW}, 9
    s_add_u32 s35, s35, {OIMG + 32768}
    v_lshrrev_b32 v13, 5, v{vLANE}
    v_mul_u32_u24 v7, {36864 - 512}, v13
    v_add3_u32 v7, v7, v{vL16}, s35
    v_and_b32 v12, 15, v{vLANE}
    v_lshrrev_b32 v14, 4, v{vLANE}
    v_lshlrev_b32 v8, 9, v14
    v_lshl_add_u32 v8, v12, 4, v8
    v_add_u32 v8, s34, v8
    v_bfe_u32 v15, v{vLANE}, 2, 2
    v_and_b32 v11, 3, v{vLANE}
    v_lshlrev_b32 v11, 3, v11
    v_mul_u32_u24 v2, 18, v13
    v_and_b32 v3, 1, v14
    v_lshl_add_u32 v2, v3, 2, v2
    v_add_u32 v2, v2, v15
    v_mul_u32_u24 v2, 144, v2
    v_lshrrev_b32 v4, 1, v15
    v_lshl_add_u32 v4, v14, 2, v4
    v_mul_u32_u24 v4, 18, v4
    v_and_b32 v3, 1, v15
    v_add3_u32 v4, v4, v3, 16
    v_mul_u32_u24 v4, 144, v4
    s_mul_i32 s59, {sRB}, 73728
    s_mul_i32 s35, {sTH}, 36864
    s_add_u32 s59, s59, s35
    s_mul_i32 s35, {sG}, 144
    s_add_u32 s59, s59, s35
    v_mul_u32_u24 v10, 1152, v12
    v_lshl_add_u32 v10, v14, 3, v10""")

def a_frags(a, base, colbytes_sgpr, extra):
    if extra: a(f"v_and_b32 v12, 8, v11\nv_add_u32 v12, 128, v12")
    else: a(f"v_add_u32 v12, {colbytes_sgpr}, v11")
    a(f"""v_add_u32 v13, v12, v2
    v_add_u32 v14, {8*5184}, v13
    v_add_u32 v15, v12, v4""")
    for s in range(18):
        b = base + 4 * s
        if s < 8: r, off, d2 = 13, s * 5184, 1152
        elif s < 16: r, off, d2 = 14, (s - 8) * 5184, 1152
        else: r, off, d2 = 15, (s - 16) * 41472, 5184
        a(f"ds_read_b64_tr_b16 {vr(b,2)}, v{r} offset:{off}\nds_read_b64_tr_b16 {vr(b+2,2)}, v{r} offset:{off+d2}")
        if s % 4 == 3: a("s_waitcnt lgkmcnt(6)")

def o_gate(a, tag, n, g0, g1, hi, st=None):
    regs = [vOST + 4 * gg + i for gg in range(g0, g1) for i in range(4)] + ([vOST + 32 + i for i in range(4)] if hi else [])
    a(f"s_mov_b32 s56, 0\ns_waitcnt vmcnt({n})\nL_og{tag}:")
    a(f"v_max3_u32 v12, v{regs[0]}, v{regs[1]}, v{regs[2]}")
    rest = regs[3:]
    while len(rest) >= 2:
        a(f"v_max3_u32 v12, v{rest[0]}, v{rest[1]}, v12"); rest = rest[2:]
    if rest: a(f"v_max_u32 v12, v{rest[0]}, v12")
    a(f"""v_cmp_eq_u32 vcc, -1, v12
    s_cbranch_vccz L_ogok{tag}
    s_add_u32 s56, s56, 1
    s_bitcmp1_b32 s56, {SPIN_BITS}
    s_cbranch_scc1 L_ogok{tag}""")
    o_loads(a, g0, g1, hi)
    a(f"s_waitcnt vmcnt(0)\ns_branch L_og{tag}\nL_ogok{tag}:")
    for gg in range(g0, g1): a(f"ds_write_b128 v6, {vr(vOST+4*gg,4)} offset:{gg*4096}")
    if hi: a(f"ds_write_b128 v7, {vr(vOST+32,4)}")
    a("s_waitcnt lgkmcnt(0)\ns_barrier")
    if st: stamp(a, st)

def out_gemm(a, tag, extra):
    DB = 4
    def rd(s):
        if s == 0: o_gate(a, tag + "0", 6, 0, 3, False, 11)
        if s == 6: o_gate(a, tag + "1", 3, 3, 6, False)
        if s == 12: o_gate(a, tag + "2", 0, 6, 8, True)
        b = vBF + 8 * (s % DB)
        off = s * 2048 if s < 16 else 32768 + (s - 16) * 2048
        a(f"ds_read_b128 {vr(b,4)}, v8 offset:{off}\nds_read_b128 {vr(b+4,4)}, v8 offset:{off+256}")
    for s in range(DB): rd(s)
    for s in range(18):
        a(f"s_waitcnt lgkmcnt({2*min(17-s, DB-1)})")
        b = vBF + 8 * (s % DB)
        for j in range(2):
            a(f"v_mfma_f32_16x16x32_bf16 {vr(16+4*j,4)}, {vr(vAF+4*s,4)}, {vr(b+4*j,4)}, {'0' if s == 0 else vr(16+4*j,4)}")
        if extra is not None:
            a(f"v_mfma_f32_16x16x32_bf16 v[24:27], {vr(vAF+72+4*s,4)}, {vr(b+4*extra,4)}, {'0' if s == 0 else 'v[24:27]'}")
        if s + DB < 18: rd(s + DB)
    a(f"""s_lshl_b32 s35, {sHH}, 5
    s_add_u32 s34, s59, s35
    s_add_u32 s35, s34, {16*1152}
    s_add_u32 s33, s59, {128 + (extra or 0)*16*1152}
    s_nop 2
    v_cvt_pk_bf16_f32 v32, v16, v17
    v_cvt_pk_bf16_f32 v33, v18, v19
    v_cvt_pk_bf16_f32 v34, v20, v21
    v_cvt_pk_bf16_f32 v35, v22, v23
    buffer_store_dwordx2 v[32:33], v10, {SOUT}, s34 offen
    buffer_store_dwordx2 v[34:35], v10, {SOUT}, s35 offen""")
    if extra is not None:
        a(f"""v_cvt_pk_bf16_f32 v36, v24, v25
        v_cvt_pk_bf16_f32 v37, v26, v27
        s_mov_b32 exec_hi, 0
        buffer_store_dwordx2 v[36:37], v10, {SOUT}, s33 offen
        s_mov_b32 exec_hi, -1""")

def slow_path(a):
    a(f"""L_slow:
    v_mov_b32 v204, v{dQH}
    v_mov_b32 v205, 0
    s_mov_b32 exec_lo, 0
    v_mov_b32 v204, 0
    s_mov_b32 exec_lo, -1
    v_mov_b32 v213, 0
    v_mov_b32 v206, 0x7ffffff0
    v_cmp_gt_u32 vcc, 32, v{vLANE}
    v_and_b32 v215, 31, v{vLANE}
    v_lshrrev_b32 v214, 5, v{vLANE}
    v_cndmask_b32 v207, v206, v{vL16}, vcc
    v_mul_u32_u24 v214, {VREC//4}, v214
    v_cmp_gt_u32 vcc, 19, v215
    v_lshl_add_u32 v214, v215, 4, v214
    v_mov_b32 v216, 0xff7fffff
    v_cndmask_b32 v214, v206, v214, vcc
    s_mov_b32 s61, 0""")
    for i in range(16): a(f"v_mov_b32 v{dOA+i}, 0")
    a(f"""L_slpass:
    s_mov_b32 s60, 0
    L_sltile:
    s_lshr_b32 s62, s60, 3
    s_mul_i32 s62, s62, {BLK}
    s_and_b32 s63, s60, 7
    s_lshl_b32 s33, s63, 10
    s_add_u32 s33, s33, s62
    buffer_load_dwordx4 v[208:211], v{vL16}, {SWS}, s33 offen {SC}
    s_and_b32 s33, s63, 1
    s_lshl_b32 s33, s33, 9
    s_lshr_b32 s32, s63, 1
    s_lshl_b32 s32, s32, 2
    s_add_u32 s33, s33, s32
    s_add_u32 s33, s33, s62
    s_add_u32 s33, s33, 8192
    buffer_load_dword v212, v207, {SWS}, s33 offen {SC}
    s_mul_i32 s33, s63, {VREC}
    s_add_u32 s33, s33, s62
    s_add_u32 s33, s33, 9216
    buffer_load_dwordx4 v[220:223], v214, {SWS}, s33 offen {SC}
    buffer_load_dwordx4 v[224:227], v214, {SWS}, s33 offen offset:{VREC//2} {SC}
    s_waitcnt vmcnt(0)
    v_mfma_f32_32x32x8_bf16 v[48:63], v[212:213], v[204:205], 0
    v_mfma_f32_32x32x16_bf16 v[48:63], v[208:211], {vr(dQA,4)}, v[48:63]
    s_nop 15
    s_cmp_lg_u32 s61, 0
    s_cbranch_scc1 L_slp2""")
    for i in range(0, 16, 2): a(f"v_max3_f32 v216, v{48+i}, v{49+i}, v216")
    a("s_branch L_slnext\nL_slp2:")
    for i in range(16): a(f"v_sub_f32 v{48+i}, v{48+i}, v216")
    for i in range(16): a(f"v_exp_f32 v{48+i}, v{48+i}")
    a("s_nop 0")
    for i in range(8): a(f"v_cvt_pk_bf16_f32 v{dP+i}, v{48+2*i}, v{49+2*i}")
    a(f"""s_nop 1
    {mf16(dOA, 220, dP)}
    {mf16(dOA, 224, dP+4)}
    s_nop 7
    L_slnext:
    s_add_u32 s60, s60, 1
    s_cmp_lt_u32 s60, 64
    s_cbranch_scc1 L_sltile
    s_cmp_lg_u32 s61, 0
    s_cbranch_scc1 L_sldone
    v_mov_b32 v217, v216
    v_mov_b32 v218, v216
    s_nop 1
    v_permlane32_swap_b32 v217, v218
    s_nop 1
    v_max3_f32 v216, v216, v217, v218
    s_mov_b32 s61, 1
    s_branch L_slpass
    L_sldone:
    s_nop 15""")
    for i in range(11): a(f"v_mov_b32 v{16+i}, v{dOA+i}")
    a(f"""v_mov_b32 v27, v26
    s_nop 1
    v_permlane32_swap_b32 v26, v27
    s_nop 1
    v_rcp_f32 v27, v26
    s_nop 0
    s_branch L_onorm""")

def kvp(a, wait):
    import gen2
    b = Asm(); gen2.kvp(b)
    t = b.text()
    j = t.index("    s_bitcmp1_b32 s5, 0\n    s_cbranch_scc1 L_kvV_f")
    a.l.append(t[:j].rstrip("\n")); wait(); t = t[j:]
    old = t[t.index("    v_and_b32 v12, 3, v179"):t.index("    s_cmp_eq_u32 s3, 0\n    s_cselect_b32 s34, 0, 16")]
    t = t.replace(old, "    v_mov_b32 v12, v179\n")
    a.l.append(t.rstrip("\n"))

def gen():
    G.BLK = BLK
    a = Asm()
    G.kernel_head(a, NAME + "_kernel")
    prologue(a)
    a(f"s_cmp_lt_u32 {sW}, 2\ns_cbranch_scc1 L_kvw")
    front_issue_q(a)
    a("s_branch L_q0\nL_kvw:")
    front_issue_kv(a)
    proj_addrs(a)
    kvp(a, lambda: (a("s_waitcnt vmcnt(0)\ns_barrier"), stamp(a, 1)))
    a("L_q0:")
    stamp(a, 6, front=True)
    a(f"""v_mov_b32 v12, 0x{TAGC >> 32:x}
    v_add_co_u32 v{vTAG}, vcc, 0x{TAGC & 0xffffffff:x}, v{vTAG}
    s_nop 1
    v_addc_co_u32 v{vTAG+1}, vcc, v12, v{vTAG+1}, vcc
    s_cmp_lt_u32 {sW}, 2
    s_cselect_b64 s[54:55], -1, 0""")
    def gate(n):
        def f():
            a(f"s_waitcnt vmcnt({n})\ns_barrier"); (stamp(a, 10) if not gate.done else None); gate.done = True
        return f
    gate.done = False
    def gate3():
        a(f"s_waitcnt vmcnt(0)\ns_cmp_lt_u32 {sW}, 2\ns_cbranch_scc1 L_nowt")
        write_wq_tail(a)
        a("s_waitcnt lgkmcnt(0)\nL_nowt:\ns_barrier")
        stamp(a, 2)
        poll_issue(a)
    def flag():
        a(f"""s_cmp_ge_u32 {sW}, 2
        s_cbranch_scc1 L_noflag
        s_and_b32 s34, s2, 7
        s_lshl_b32 s34, s34, 10
        s_lshr_b32 s35, s2, 3
        s_lshl_b32 s35, s35, 5
        s_add_u32 s34, s34, s35
        s_lshl_b32 s35, {sW}, 3
        s_add_u32 s34, s34, s35
        s_add_u32 s34, s34, {WS_FLAG}
        v_mov_b32 v12, 0
        s_waitcnt vmcnt(0)
        s_mov_b64 exec, 1
        buffer_store_dwordx2 {vr(vTAG,2)}, v12, {SWS}, s34 offen {SC}
        s_mov_b64 exec, -1
        L_noflag:""")
        stamp(a, 11, front=True)
    after = {}
    nd = [0]
    def duty(txt):
        def f():
            nd[0] += 1
            a(f"s_mov_b64 vcc, s[54:55]\ns_cbranch_vccnz L_fd{nd[0]}\n{txt}\nL_fd{nd[0]}:")
        return f
    l2, l3 = stage_load_list(2), stage_load_list(3)
    a2 = {0: l2[0:2], 1: l2[2:4], 2: l2[4:5], 3: l2[5:6]}
    a3 = {5 + i: [l3[i]] for i in range(6)}
    for k_, v_ in {**a2, **a3}.items(): after[k_] = duty("\n".join(v_))
    def both(f, g_): return lambda: (f(), g_())
    after[2] = both(flag, after[2])
    after[14] = lambda: attn_setup(a)
    after[17] = lambda: q_addr(a)
    global G0
    G0 = 6
    proj(a, q_reads(a), {0: gate(6), 9: gate(6), 18: gate(6), 27: gate3}, after)
    a(f"s_cmp_ge_u32 {sW}, 2\ns_cbranch_scc1 L_q1")
    poll_wait(a, "a")
    kv_dma(a, 0, 19)
    a("L_q1:\ns_nop 7\ns_nop 1")
    q_finish(a)
    stamp(a, 3)
    a("s_barrier")
    q_write(a)
    a("s_waitcnt vmcnt(0) lgkmcnt(0)\ns_barrier")
    stamp(a, 4); cstamp(a, 8)
    attn_pre(a)
    a(f"s_cmp_lt_u32 {sW}, 2\ns_cbranch_scc1 L_pollok_b")
    poll_wait(a, "b")
    a(f"""s_cmp_lt_u32 {sW}, 2
    s_cselect_b64 vcc, -1, 0
    s_nop 13
    s_waitcnt lgkmcnt(4)
    {mf16(dS[0], dKL[0], dQA)}
    {mf16(dS[0]+16, dKL[0], dQB)}
    s_nop 7
    s_nop 3""")
    attention(a)
    stamp(a, 5); cstamp(a, 9)
    o_combine(a)
    stamp(a, 12)
    o_store(a)
    stamp(a, 13)
    a(f"""s_cmp_lg_u32 s2, 0
    s_cbranch_scc1 L_noep
    s_cmp_lg_u32 {sW}, 0
    s_cbranch_scc1 L_noep
    v_mov_b32 v12, {WS_EPOCH}
    s_mov_b64 exec, 1
    buffer_store_dwordx2 {vr(vTAG,2)}, v12, {SWS}, 0 offen {SC}
    s_mov_b64 exec, -1
    s_waitcnt vmcnt(0)
    L_noep:""")
    tail_addr(a)
    a("s_barrier")
    stamp(a, 3, True)
    a(f"s_lshl_b32 s58, {sHH}, 5")
    a_frags(a, vAF, "s58", False)
    stamp(a, 6)
    a(f"""s_add_u32 s34, {sW}, 2
    s_bitcmp1_b32 s34, 2
    s_cbranch_scc1 L_gplain""")
    o_loads(a, 0, 8, True)
    a_frags(a, vAF + 72, None, True)
    a(f"s_waitcnt lgkmcnt(0)\ns_bitcmp1_b32 {sW}, 0\ns_cbranch_scc1 L_gx1")
    out_gemm(a, "a", 0)
    a("s_branch L_end_f\nL_gx1:")
    out_gemm(a, "b", 1)
    a("s_branch L_end_f\nL_gplain:")
    o_loads(a, 0, 8, True)
    a("s_waitcnt lgkmcnt(0)")
    out_gemm(a, "c", None)
    G.finish(a, "f", 0, 14)
    slow_path(a)
    hdr = G.HEADER + f"; @launch grid=(256,1,1) block=(512,1,1) lds={LDS_TOTAL}\n"
    return (hdr + '.amdgcn_target "amdgcn-amd-amdhsa--gfx950"\n.text\n' + a.text() + '.section .rodata,"a"\n' + G.descriptor(NAME + "_kernel"))

if __name__ == "__main__":
    if "--stamps" in sys.argv:
        G.STAMPS = True; sys.argv.remove("--stamps")
    for x in [x for x in sys.argv if "=" in x]:
        k, v = x.split("="); OPT[k] = int(v); sys.argv.remove(x)
    out = sys.argv[1] if len(sys.argv) > 1 else f"cdna_kernels/{NAME}.s"
    open(out, "w").write(gen())
    print("wrote", out)
```

```python
import sys, math, struct, re
import gen as G
from gen import Asm, vr, set_exec, MASK54, MASKKV, stamp, cstamp
from gen import sW, sRB, sG, sHH, sTH, SX, SWQ, SWKV, SWO, SOUT, SWS, vLANE, vXSRC, vWSRC, vKVSRC, vL16, vXA, vWA, vD
from gen import WIMG, LDS_TOTAL, WS_FLAG, WS_OFLAG, WS_O, NAME

VREC = 1216
PAIR = 304
WKV = 198 * PAIR
XIMG = 88704
G.WKV, G.XIMG = WKV, XIMG
MASK57 = sum(1 << l for l in range(57) if l % 19 != 18)
vWSRCQ = 175
BLK = 19456
KVSZ = 8 * BLK
QX = 155648
WS_EPOCH = 0x3E000
OX0, OX1 = 83968, 155648
OIMG = 85248
OWG = 9216
WS_SIZE = WS_O + 256 * OWG
SC = "sc1"
SPIN_BITS = 18
TAGC = 0x9E3779B97F4A7C15
D = 5
vPA = 32
dS = (16, 48); dP = 80; dOA, dOB = 96, 112; dQA, dQB, dQH = 128, 132, 136
dKL = (140, 168); dKH = (144, 146); dV = (148, 156); dKA, dVA, dHA = 164, 165, 166
vTAG = 172
vWH = 174
vPOLL = 176
vWST = 216
vOST = 184
OPT = dict(prio=2)

_stamp0 = stamp
def stamp(a, j, tail=False, front=False):
    if OPT.get("tail"):
        if front or (j in (1, 10, 2, 3) and not tail): return
    elif OPT.get("gates"):
        if tail or front is True or (j in (12, 13, 6, 11) and front != "g"): return
    elif front == "g": return
    elif OPT.get("front"):
        if tail or (j in (12, 13, 6, 11) and not front): return
    elif tail or front: return
    _stamp0(a, j)
def koff(u): return (u >> 2) * BLK + (u & 3) * 1024
def voff(u): return (u >> 2) * BLK + (u & 3) * VREC
def mf16(d, A, B, z=False): return f"v_mfma_f32_32x32x16_bf16 {vr(d,16)}, {vr(A,4)}, {vr(B,4)}, {'0' if z else vr(d,16)}"
def hi2b(N, u): return f"v_mfma_f32_32x32x4_2b_bf16 {vr(N,32)}, {vr(dKH[(u>>2)&1],2)}, {vr(dQH+2*((u>>1)&1),2)}, 0 cbsz:1 abid:{u&1}"

def prologue(a):
    if G.STAMPS:
        for j in range(14): a(f"s_mov_b32 s{64+2*j}, 0")
    stamp(a, 0)
    if OPT.get("crit", 1): a("s_setprio 3")
    a(f"""s_cmp_ge_u32 s2, 256
    s_cbranch_scc1 L_exit_f
    s_load_dwordx16 s[36:51], s[0:1], 0
    v_lshrrev_b32 v12, 6, v0
    v_and_b32 v{vLANE}, 63, v0
    v_readfirstlane_b32 {sW}, v12
    s_and_b32 {sRB}, s2, 7
    s_lshl_b32 {sRB}, {sRB}, 2
    s_lshr_b32 {sG}, s2, 6
    s_add_u32 {sRB}, {sRB}, {sG}
    s_bfe_u32 {sG}, s2, 0x30003
    s_and_b32 {sHH}, {sW}, 3
    s_lshr_b32 {sTH}, {sW}, 2
    v_mul_u32_u24 v12, 171, v{vLANE}
    v_lshrrev_b32 v12, 9, v12
    v_mul_u32_u24 v12, 12, v12
    v_lshlrev_b32 v{vL16}, 4, v{vLANE}
    v_sub_u32 v{vKVSRC}, v{vL16}, v12
    s_and_b32 s60, {sG}, 6
    s_add_u32 s60, s60, {sW}
    s_and_b32 s60, s60, 7
    s_and_b32 s61, s60, 3
    s_lshl_b32 s34, s61, 2
    v_lshrrev_b32 v12, 4, v{vLANE}
    v_add_u32 v12, s34, v12
    v_xor_b32 v12, v12, v{vLANE}
    v_and_b32 v12, 7, v12
    v_lshrrev_b32 v13, 3, v{vLANE}
    v_mul_u32_u24 v13, 1152, v13
    v_lshl_add_u32 v{vXSRC}, v12, 4, v13
    v_mul_u32_u24 v12, 57, v{vLANE}
    v_lshrrev_b32 v12, 9, v12
    v_mul_u32_u24 v12, 1008, v12
    v_add_u32 v{vWSRC}, v12, v{vL16}
    v_mul_u32_u24 v12, 27, v{vLANE}
    v_lshrrev_b32 v12, 9, v12
    v_mul_u32_u24 v13, 19, v12
    v_sub_u32 v13, v{vLANE}, v13
    v_mul_u32_u24 v12, 2304, v12
    v_lshl_add_u32 v12, v13, 4, v12
    v_cmp_le_u32 vcc, 9, v13
    v_add_u32 v13, 1008, v12
    v_mov_b32 v253, {WS_EPOCH}
    v_cndmask_b32 v{vWSRCQ}, v12, v13, vcc
    s_mul_i32 s62, {sRB}, 73728
    s_mul_i32 s35, s60, 9216
    s_add_u32 s62, s62, s35
    s_lshr_b32 s63, s60, 2
    s_mul_i32 s63, s63, 36864
    s_lshl_b32 s35, s61, 10
    s_add_u32 s63, s63, s35
    s_add_u32 s63, s63, {XIMG}
    s_mov_b32 s18, {576*36}
    s_mov_b32 s19, 0x20000
    s_mov_b32 s30, {(16 << 20) if G.STAMPS else WS_SIZE}
    s_mov_b32 s31, 0x20000
    s_mov_b32 s10, {2048*1152}
    s_mov_b32 s11, 0x20000
    s_mov_b32 s14, {576*1152}
    s_mov_b32 s15, 0x20000
    s_mov_b32 s22, {576*1152}
    s_mov_b32 s23, 0x20000
    s_mov_b32 s26, {2048*1152}
    s_mov_b32 s27, 0x20000
    s_bitcmp1_b32 {sG}, 0
    s_waitcnt lgkmcnt(0)
    s_cselect_b32 s16, s42, s40
    s_cselect_b32 s17, s43, s41
    s_mov_b32 s8, s36
    s_mov_b32 s9, s37
    s_mov_b32 s28, s50
    s_mov_b32 s29, s51
    s_mov_b32 s12, s38
    s_mov_b32 s13, s39
    s_mov_b32 s20, s44
    s_mov_b32 s21, s45
    s_mov_b32 s24, s46
    s_mov_b32 s25, s47""")
    stamp(a, 12, front=True)

def x_loads(a, c0, c1):
    for c in range(c0, c1):
        a(f"s_add_u32 m0, s63, {3968*c}\ns_nop 0\nbuffer_load_dwordx4 v{vXSRC}, {SX}, s62 offen offset:{128*c} lds")

def front_issue_kv(a):
    x_loads(a, 0, 9)
    stamp(a, 13, front=True)
    if OPT.get("crit", 1): a("s_setprio 2")
    a(f"buffer_load_dwordx2 {vr(vTAG,2)}, v253, {SWS}, 0 offen {SC}")
    if OPT.get("tlb", 1):
        a(f"""s_lshr_b32 s34, {sRB}, 2
        s_mul_i32 s34, s34, {BLK}
        v_mov_b32 v12, 0
        buffer_load_dword v254, v12, {SWS}, s34 offen {SC}
        s_mov_b32 s34, {WS_FLAG}
        buffer_load_dword v255, v12, {SWS}, s34 offen {SC}""")
    a(f"""s_lshl_b32 s54, {sRB}, 3
    s_add_u32 s54, s54, {sG}
    s_mul_i32 s54, s54, {OWG}
    s_lshl_b32 s35, {sW}, 12
    s_add_u32 s54, s54, s35
    s_add_u32 s54, s54, {WS_O}
    s_add_u32 s55, s54, 4096""")
    for i in range(4): a(f"v_mov_b32 v{16+i}, -1")
    for i in range(4): a(f"buffer_store_dwordx4 v[16:19], v{vL16}, {SWS}, s54 offen offset:{1024*i} {SC}")
    a(f"buffer_store_dwordx4 v[16:19], v{vL16}, {SWS}, s55 offen {SC}")

XC = [(0, 3), (3, 5), (5, 7), (7, 9)]
def stage_load_list(st):
    out = []
    for c in range(*XC[st]):
        out.append(f"s_add_u32 m0, s63, {3968*c}\ns_nop 0\nbuffer_load_dwordx4 v{vXSRC}, {SX}, s62 offen offset:{128*c} lds")
    for i in range(4 * st, 4 * st + 4):
        pre = f"s_add_u32 s61, s60, {36*1152*i}\ns_mov_b64 exec, s[92:93]\n"
        out.append(f"s_add_u32 m0, s94, {18*PAIR*i}\n{pre}buffer_load_dwordx4 v{vWSRCQ}, {SWQ}, s61 offen lds\ns_mov_b64 exec, -1")
    return out

def front_issue_q(a):
    B1 = OPT.get("b1", 0)
    a(f"s_cmp_ge_u32 {sW}, 6\ns_cbranch_scc1 L_touch")
    a(f"""s_sub_u32 s33, {sW}, 2
    s_mul_i32 s34, s33, {7*756}
    s_mul_i32 s35, s33, {7*1008}
    s_mov_b32 exec_hi, 0x7fffffff""")
    for i in range(7):
        a(f"s_add_u32 m0, s35, {WKV + 1008*i}\ns_add_u32 s34, s34, {756 if i else 0}\nbuffer_load_dwordx4 v{vKVSRC}, {SWKV}, s34 offen lds")
    a("s_mov_b32 exec_hi, -1")
    a("L_touched:")
    a(f"""s_sub_u32 s33, {sW}, 2
    s_mul_i32 s60, s33, {6*1152}
    s_mul_i32 s35, {sG}, 144
    s_add_u32 s60, s60, s35
    s_mul_i32 s94, s33, {3*PAIR}
    s_mov_b32 s92, 0x{MASK57 & 0xffffffff:x}
    s_mov_b32 s93, 0x{MASK57 >> 32:x}""")
    stamp(a, 13, front=True)
    if OPT.get("b1pos", -1) < 0:
        setup_all(a)
        a(f"s_cmp_ge_u32 {sW}, 6\ns_cbranch_scc1 L_b1\ns_waitcnt vmcnt(0)\nL_b1:\ns_barrier"); stamp(a, 1)
    for st in range(2):
        a(f"s_setprio {2 - st}")
        for t in stage_load_list(st): a(t)
        if st == 0: a(f"buffer_load_dwordx2 {vr(vTAG,2)}, v253, {SWS}, 0 offen {SC}")
        if st == 0 and OPT.get("b1pos", -1) == 0:
            a(f"s_cmp_ge_u32 {sW}, 6\ns_cbranch_scc1 L_b1\ns_waitcnt vmcnt(8)\nL_b1:\ns_barrier"); stamp(a, 1)
        if st == OPT.get("setup", 1) and OPT.get("b1pos", -1) == 0: setup_all(a)
    a("s_setprio 0")
    if not OPT.get("twob", 1):
        a("s_waitcnt vmcnt(7)\ns_barrier"); stamp(a, 1)

def setup_all(a):
    proj_addrs(a); attn_setup(a); q_addr(a)

def NT(): return 0
def wq_touch(a, r0, r1):
    for r in range(r0, r1):
        a(f"s_mul_i32 s34, s33, {162*128}\ns_add_u32 s34, s34, {8192*r}")
        if r == 2: a("s_mov_b32 exec_hi, 3")
        a(f"buffer_load_dword v254, v12, {SWQ}, s34 offen")
        if r == 2: a("s_mov_b32 exec_hi, -1")
def touch(a):
    a(f"""L_touch:
    s_lshr_b32 s33, s2, 3
    v_lshlrev_b32 v12, 7, v{vLANE}
    s_cmp_eq_u32 {sW}, 7
    s_cbranch_scc1 L_t7""")
    for _ in range(OPT.get("tdelay", 0)): a("s_nop 15")
    if OPT.get("touch", 1): wq_touch(a, 0, 2)
    a("s_branch L_touched\nL_t7:")
    if OPT.get("xtouch", 0):
        a(f"""s_and_b32 s34, s2, 7
        s_mul_i32 s34, s34, {4*73728}
        s_mul_i32 s35, s33, {72*128}
        s_add_u32 s34, s34, s35
        buffer_load_dword v254, v12, {SX}, s34 offen
        s_add_u32 s34, s34, 8192
        s_mov_b64 exec, 0xff
        buffer_load_dword v254, v12, {SX}, s34 offen
        s_mov_b64 exec, -1""")
    if OPT.get("ctouch", 1):
        a(f"""s_getpc_b64 s[34:35]
        L_pc:
        s_and_b32 s32, s33, 3
        s_lshl_b32 s32, s32, 13
        v_add_u32 v13, s32, v12
        v_min_u32 v13, CODE_END - L_pc - 64, v13
        global_load_dword v254, v13, s[34:35]""")
    for _ in range(OPT.get("tdelay", 0)): a("s_nop 15")
    if OPT.get("touch", 1): wq_touch(a, 2, 3)
    a("s_branch L_touched")

def write_wq_tail(a, i0=0, i1=4):
    a(f"""s_sub_u32 s33, {sW}, 2
    s_mul_i32 s35, s33, {3*PAIR}
    s_add_u32 s35, s35, {WIMG + 216*PAIR}
    v_add_u32 v12, s35, v{vL16}""")
    set_exec(a, MASK57)
    for i in range(i0, i1): a(f"ds_write_b128 v12, {vr(vWST+4*i,4)} offset:{i*18*PAIR}")
    a("s_mov_b64 exec, -1")

def proj(a, reads, gates, after=None):
    def rd(s):
        if s in gates: gates[s]()
        reads(s, vPA + 8 * (s % D))
    for s in range(D): rd(s)
    for s in range(36):
        a(f"s_waitcnt lgkmcnt({3*min(35-s, D-1)})")
        b = vPA + 8 * (s % D)
        a(f"v_mfma_f32_32x32x16_bf16 {vr(vD,16)}, {vr(b,4)}, {vr(b+4,4)}, {'0' if s == 0 else vr(vD,16)}")
        if s + D < 36: rd(s + D)
        if after and s in after: after[s]()

def q_reads(a):
    def f(s, b):
        wa, off = (vWA, s * 8 * PAIR) if s < 18 else (vWA + 1, (s - 18) * 8 * PAIR)
        a(f"""ds_read_b64_tr_b16 {vr(b,2)}, v{wa} offset:{off}
        ds_read_b64_tr_b16 {vr(b+2,2)}, v{wa} offset:{off+2*PAIR}
        ds_read_b128 {vr(b+4,4)}, v{vXA+(s&3)} offset:{(s>>2)*4096}""")
    return f
def o_reads(a):
    def f(s, b):
        if s < 16: wa, off, d2 = vWA, s * 2592, 576
        elif s < 32: wa, off, d2 = vWA + 1, (s - 16) * 2592, 576
        else: wa, off, d2 = vWH, (s - 32) * 20736 - (0 if s < 35 else 0), 5184
        if off + d2 > 65535: wa, off = vWH + 1, off - 41472
        a(f"""ds_read_b64_tr_b16 {vr(b,2)}, v{wa} offset:{off}
        ds_read_b64_tr_b16 {vr(b+2,2)}, v{wa} offset:{off+d2}
        ds_read_b128 {vr(b+4,4)}, v{vXA} offset:{s*1024}""")
    return f

def proj_addrs(a):
    b = Asm(); G.proj_addrs(b)
    t = b.text()
    old = t[t.index(f"    v_lshl_add_u32 v14, v15, 3, v14"):t.index(f"    v_add3_u32 v{vWA}")]
    new = f"""    v_lshrrev_b32 v12, 1, v14
    v_lshl_add_u32 v12, v15, 2, v12
    v_mul_u32_u24 v12, {PAIR}, v12
    v_and_b32 v14, 1, v14
    v_mul_u32_u24 v14, 144, v14
    v_add_u32 v14, v14, v12
"""
    t = t.replace(old, new).replace(f"{18*2304}", f"{18*8*PAIR}")
    a.l.append(t.rstrip("\n"))

def attn_setup(a):
    a(f"""v_mov_b32 v{dQH+1}, 0
    v_mov_b32 v{dQH+2}, 0
    v_and_b32 v12, 31, v{vLANE}
    v_lshrrev_b32 v14, 5, v{vLANE}
    v_mul_u32_u24 v14, {VREC//4}, v14
    v_lshl_add_u32 v14, v12, 4, v14
    v_cmp_lt_u32 vcc, 18, v12
    s_mul_i32 s34, {sTH}, {4*VREC}
    s_add_u32 s34, s34, 9216
    v_add_u32 v{dVA}, s34, v14
    v_mov_b32 v13, 0x40000
    v_cndmask_b32 v{dVA}, v{dVA}, v13, vcc
    s_lshl_b32 s34, {sTH}, 12
    v_add_u32 v{dKA}, s34, v{vL16}
    s_lshl_b32 s34, {sTH}, 3
    s_add_u32 s34, s34, 8192
    v_add_u32 v{dHA}, s34, v{vL16}
    s_lshr_b32 s34, {sRB}, 2
    s_add_u32 s34, s34, {sW}
    s_add_u32 s34, s34, 1
    s_and_b32 s34, s34, 7
    s_mul_i32 s58, s34, {BLK}
    s_lshl_b32 s34, s34, 10
    s_add_u32 s57, s34, {WS_FLAG}
    s_mul_i32 s59, {sW}, {BLK}""")

def poll_issue(a):
    a(f"""v_and_b32 v{vPOLL+4}, 31, v{vLANE}
    v_lshlrev_b32 v{vPOLL+4}, 5, v{vPOLL+4}
    buffer_load_dwordx4 {vr(vPOLL,4)}, v{vPOLL+4}, {SWS}, s57 offen {SC}""")
def poll_wait(a, tag):
    a(f"""s_mov_b32 s56, 0
    s_waitcnt vmcnt(0)
    L_poll_{tag}:
    v_cmp_ne_u64 vcc, {vr(vPOLL,2)}, {vr(vTAG,2)}
    v_cmp_ne_u64 s[32:33], {vr(vPOLL+2,2)}, {vr(vTAG,2)}
    s_or_b64 vcc, vcc, s[32:33]
    s_cbranch_vccz L_pollok_{tag}
    s_add_u32 s56, s56, 1
    s_bitcmp1_b32 s56, {SPIN_BITS}
    s_cbranch_scc1 L_pollok_{tag}
    buffer_load_dwordx4 {vr(vPOLL,4)}, v{vPOLL+4}, {SWS}, s57 offen {SC}
    s_waitcnt vmcnt(0)
    s_branch L_poll_{tag}
    L_pollok_{tag}:""")
def kv_dma(a, r0, r1):
    out = []
    for r in range(r0, r1):
        if r % 4 == 0 or r == r0:
            out.append(f"s_add_u32 m0, s59, {(r//4)*4096}\ns_add_u32 s55, s58, {(r//4)*4096}")
        if r == 18: out.append("s_mov_b32 exec_hi, 0")
        out.append(f"buffer_load_dwordx4 v{vL16}, {SWS}, s55 offen offset:{(r%4)*1024} {SC} lds")
        if r == 18: out.append("s_mov_b32 exec_hi, -1")
    a("\n".join(out))

def q_finish(a):
    a(f"""s_mov_b32 s34, 0x{G.QSCALE:x}
    s_bitcmp1_b32 {sHH}, 0
    s_cbranch_scc1 L_qodd""")
    def body(lo, hi):
        for r in list(range(lo, lo + 8)) + [hi, hi + 1]: a(f"v_mul_f32 v{vD+r}, s34, v{vD+r}")
        for i in range(4): a(f"v_cvt_pk_bf16_f32 v{32+i}, v{vD+lo+2*i}, v{vD+lo+2*i+1}")
        a(f"v_cvt_pk_bf16_f32 v36, v{vD+hi}, v{vD+hi+1}")
    body(0, 8)
    a("s_branch L_qjoin\nL_qodd:")
    body(2, 14)
    a("L_qjoin:")
def q_addr(a):
    a(f"""s_lshl_b32 s34, {sW}, 10
    s_add_u32 s34, s34, {QX}
    v_add_u32 v72, s34, v{vL16}
    s_lshr_b32 s34, {sHH}, 1
    s_mul_i32 s34, s34, {BLK - 512}
    s_lshl_b32 s35, {sHH}, 8
    s_add_u32 s34, s34, s35
    s_add_u32 s34, s34, {BLK - 512}
    v_lshl_add_u32 v74, v{vLANE}, 2, s34
    s_lshl_b32 s35, {sTH}, 7
    v_add_u32 v73, s35, v74
    v_xor_b32 v74, s35, v74
    s_xor_b32 s34, {sW}, 4
    s_lshl_b32 s34, s34, 10
    s_add_u32 s34, s34, {QX}
    v_add_u32 v75, s34, v{vL16}""")
def q_write(a):
    a(f"""ds_write_b128 v72, v[32:35]
    s_mov_b32 exec_hi, 0
    ds_write_b32 v73, v36
    s_mov_b32 exec_hi, -1""")

def attn_pre(a):
    a(f"""ds_read_b32 v{dQH}, v74
    ds_read_b64 {vr(dKH[0],2)}, v{dHA}
    ds_read_b128 {vr(dQA,4)}, v72
    ds_read_b128 {vr(dKL[0],4)}, v{dKA}
    ds_read_b128 {vr(dQB,4)}, v75
    ds_read_b32 v{dQH+3}, v74
    ds_read_b128 {vr(dV[0],4)}, v{dVA}
    ds_read_b128 {vr(dV[0]+4,4)}, v{dVA} offset:{VREC//2}
    ds_read_b128 {vr(dKL[1],4)}, v{dKA} offset:{koff(1)}
    s_waitcnt lgkmcnt(7)
    {hi2b(dS[0], 0)}""")

def dstep(a, T, duty):
    t = T & 7
    C, N = dS[t & 1], dS[(t + 1) & 1]
    last = T == 31
    def x(i): a(f"v_exp_f32 v{C+i}, v{C+i}")
    def k(i):
        if i < 0:
            if T: a(f"v_cvt_pk_bf16_f32 v{dP+15}, v{N+30}, v{N+31}")
        else: a(f"v_cvt_pk_bf16_f32 v{dP+i}, v{C+2*i}, v{C+2*i+1}")
    def g(*jj):
        for j in jj: x(2*j); x(2*j+1); k(j-1)
    def du(s):
        if s in duty: a(duty[s])
    Vp, Vc = dV[(t + 1) & 1], dV[t & 1]
    KLc, KLn = dKL[(t + 1) & 1], dKL[t & 1]
    g(0, 1)
    if T: a(mf16(dOB, Vp + 4, dP + 12))
    a("s_waitcnt lgkmcnt(0)")
    g(2); x(6)
    if not last: a(hi2b(N, t + 1))
    du(0)
    x(7); k(2); g(4, 5, 6)
    a(mf16(dOA, Vc, dP, T == 0))
    if not last: a(f"ds_read_b128 {vr(Vp,4)}, v{dVA} offset:{voff(t+1)}")
    g(7); du(1); g(8)
    if not last:
        a(mf16(N, KLc, dQA)); a(f"ds_read_b128 {vr(Vp+4,4)}, v{dVA} offset:{voff(t+1)+VREC//2}")
    g(9); du(2); g(10)
    a(mf16(dOA, Vc + 4, dP + 4))
    if T < 30: a(f"ds_read_b128 {vr(KLn,4)}, v{dKA} offset:{koff(t+2)}")
    g(11, 12); du(3); g(13)
    a(mf16(dOB, Vc, dP + 8, T == 0))
    if t & 3 == 1 and T < 28: a(f"ds_read_b64 {vr(dKH[((t>>2)+1)&1],2)}, v{dHA} offset:{((t>>2)+1)*BLK}")
    g(14); x(30)
    if not last: a(mf16(N + 16, KLc, dQB))
    x(31); k(14)
    if t == 7 and not last:
        for r in (dKA, dVA, dHA): a(f"v_add_u32 v{r}, {2*BLK}, v{r}")

def attention(a):
    duties = {T: {} for T in range(32)}
    groups = [(0, 4), (4, 8), (8, 12), (12, 16), (16, 19)]
    for i, (r0, r1) in enumerate(groups):
        b = Asm(); b(f"s_cbranch_vccnz L_nd{i}"); kv_dma(b, r0, r1); b(f"L_nd{i}:")
        duties[i // 2][1 + 2 * (i % 2)] = b.text()
    for i in range(11):
        txt = f"s_add_u32 m0, s59, {56*144*i}\ns_add_u32 s58, s58, {56*1152 if i else 0}\nbuffer_load_dwordx4 v{vWSRC}, {SWO}, s58 offen lds"
        if i == 10: txt = f"s_cmp_ge_u32 {sW}, 3\ns_cbranch_scc1 L_nwo\n{txt}\nL_nwo:"
        duties[21 + i * 2 // 3][1 + (i * 2 % 3)] = txt
    for T in range(32):
        if OPT["prio"] == 1 and T % 8 == 0: a(f"s_setprio {3 - T // 8}")
        if OPT["prio"] == 2:
            if T in (0, 5, 21): a(f"s_cmp_eq_u32 {sTH}, 0\ns_cbranch_scc1 L_pr{T}\ns_setprio 1\nL_pr{T}:")
            if T in (4, OPT.get("d1", 18), OPT.get("d2", 30)): a("s_setprio 0")
        dstep(a, T, duties[T])
        if T == 4: a("s_waitcnt vmcnt(0)\ns_barrier")
        if T == 20:
            a(f"""s_mul_i32 s58, {sW}, {7*1152}
            s_mul_i32 s35, {sG}, 144
            s_add_u32 s58, s58, s35
            s_mul_i32 s59, {sW}, {7*144}
            s_barrier""")
    a(f"""v_cvt_pk_bf16_f32 v{dP+15}, v{dS[1]+30}, v{dS[1]+31}
    s_mul_i32 s34, {sW}, 2560
    s_add_u32 s35, s34, {OX1 - 5*2560}
    s_add_u32 s34, s34, {OX0}
    s_cmp_ge_u32 {sW}, 5
    {mf16(dOB, dV[1]+4, dP+12)}
    s_cselect_b32 s34, s35, s34
    v_add_u32 v12, s34, v{vL16}
    s_xor_b32 s33, {sW}, 4
    s_mul_i32 s34, s33, 2560
    s_add_u32 s35, s34, {OX1 - 5*2560}
    s_add_u32 s34, s34, {OX0}
    s_cmp_ge_u32 s33, 5
    s_cselect_b32 s34, s35, s34
    v_add_u32 v13, s34, v{vL16}""")

def o_combine(a):
    a(f"""v_mov_b32 v40, 0
    v_mov_b32 v41, 0
    v_mov_b32 v42, 0
    s_nop 3""")
    def body(keep, send):
        a(f"""ds_write_b128 v12, {vr(send,4)}
        ds_write_b128 v12, {vr(send+4,4)} offset:1024
        s_mov_b32 exec_hi, 0
        ds_write_b128 v12, {vr(send+8,4)} offset:2048
        s_mov_b32 exec_hi, -1
        s_waitcnt vmcnt(0) lgkmcnt(0)
        s_barrier
        ds_read_b128 v[32:35], v13
        ds_read_b128 v[36:39], v13 offset:1024
        s_mov_b32 exec_hi, 0
        ds_read_b128 v[40:43], v13 offset:2048
        s_mov_b32 exec_hi, -1""")
        a(f"""s_lshl_b32 s54, {sRB}, 3
        s_mul_i32 s54, s54, {OWG}
        s_add_u32 s54, s54, {WS_O}
        s_mul_i32 s55, {sG}, {OWG}
        s_add_u32 s55, s55, s54
        s_lshl_b32 s34, {sW}, 10
        s_add_u32 s52, s34, s54
        s_add_u32 s34, s34, s55
        s_lshl_b32 s35, {sTH}, 9
        s_add_u32 s35, s35, s55
        s_lshl_b32 s33, {sHH}, 2
        s_add_u32 s35, s35, s33
        s_add_u32 s35, s35, 8192
        s_mul_i32 s53, {sW}, {OWG}
        s_add_u32 s53, s53, s54
        s_add_u32 s53, s53, 8192
        s_waitcnt lgkmcnt(0)""")
        for i in (10, 0, 1, 2, 3, 4, 5, 6, 7, 8, 9): a(f"v_add_f32 v{16+i}, v{keep+i}, v{32+i}")
    body(dOA, dOB)

def o_store(a):
    a(f"""v_mov_b32 v27, v26
    v_max3_f32 v28, |v16|, |v17|, |v18|
    v_max3_f32 v29, |v19|, |v20|, |v21|
    v_permlane32_swap_b32 v26, v27
    v_max3_f32 v28, |v22|, |v23|, v28
    v_max3_f32 v29, |v24|, |v25|, v29
    v_add_f32 v30, v16, v17
    v_cmp_le_f32 vcc, 0x2b800000, v26
    v_cmp_ge_f32 s[32:33], s[90:91], s[90:91]""" if False else f"""v_mov_b32 v27, v26
    v_add_f32 v28, |v16|, |v17|
    v_add_f32 v29, |v18|, |v19|
    v_permlane32_swap_b32 v26, v27
    v_add_f32 v28, |v20|, v28
    v_add_f32 v29, |v21|, v29
    v_rcp_f32 v27, v26
    v_add_f32 v28, |v22|, v28
    v_add_f32 v29, |v23|, v29
    v_add_f32 v28, |v24|, v28
    v_add_f32 v29, |v25|, v29
    v_cmp_nle_f32 vcc, 0x2b800000, v26
    v_add_f32 v28, v29, v28
    s_mov_b64 s[32:33], vcc
    v_cmp_nge_f32 vcc, 0x58800000, v26
    s_or_b64 s[32:33], s[32:33], vcc
    v_cmp_nge_f32 vcc, 0x7e800000, v28
    s_or_b64 vcc, s[32:33], vcc
    s_cbranch_vccnz L_slow
    L_onorm:""")
    for i in range(10): a(f"v_mul_f32 v{16+i}, v{16+i}, v27")
    for i in range(5): a(f"v_cvt_pk_bf16_f32 v{32+i}, v{16+2*i}, v{17+2*i}")
    for i in range(5): a(f"v_min_u32 v{32+i}, -2, v{32+i}")
    stamp(a, 1, True)
    a(f"""buffer_store_dwordx4 v[32:35], v{vL16}, {SWS}, s34 offen {SC}""")
    stamp(a, 10, True)
    a(f"""s_mov_b32 exec_hi, 0
    buffer_store_dword v36, v{vL16}, {SWS}, s35 offen {SC}
    s_mov_b32 exec_hi, -1""")

vAF = 32
vBF = 220
vT = 2
def o_loads(a, g0, g1, hi):
    for gg in range(g0, g1):
        a(f"s_add_u32 s33, s52, {gg*OWG}\nbuffer_load_dwordx4 {vr(vOST+4*gg,4)}, v{vL16}, {SWS}, s33 offen {SC}")
    if hi: a(f"buffer_load_dwordx4 {vr(vOST+32,4)}, v{vL16}, {SWS}, s53 offen {SC}")

def tail_addr(a):
    a(f"""s_mul_i32 s34, {sTH}, 36864
    s_add_u32 s34, s34, {OIMG}
    s_lshl_b32 s35, {sHH}, 10
    s_add_u32 s35, s35, s34
    v_add_u32 v6, s35, v{vL16}
    s_lshl_b32 s35, {sW}, 9
    s_add_u32 s35, s35, {OIMG + 32768}
    v_lshrrev_b32 v13, 5, v{vLANE}
    v_mul_u32_u24 v7, {36864 - 512}, v13
    v_add3_u32 v7, v7, v{vL16}, s35
    v_and_b32 v12, 15, v{vLANE}
    v_lshrrev_b32 v14, 4, v{vLANE}
    v_lshlrev_b32 v8, 9, v14
    v_lshl_add_u32 v8, v12, 4, v8
    v_add_u32 v8, s34, v8
    v_bfe_u32 v15, v{vLANE}, 2, 2
    v_and_b32 v11, 3, v{vLANE}
    v_lshlrev_b32 v11, 3, v11
    v_mul_u32_u24 v2, 18, v13
    v_and_b32 v3, 1, v14
    v_lshl_add_u32 v2, v3, 2, v2
    v_add_u32 v2, v2, v15
    v_mul_u32_u24 v2, 144, v2
    v_lshrrev_b32 v4, 1, v15
    v_lshl_add_u32 v4, v14, 2, v4
    v_mul_u32_u24 v4, 18, v4
    v_and_b32 v3, 1, v15
    v_add3_u32 v4, v4, v3, 16
    v_mul_u32_u24 v4, 144, v4
    s_mul_i32 s59, {sRB}, 73728
    s_mul_i32 s35, {sTH}, 36864
    s_add_u32 s59, s59, s35
    s_mul_i32 s35, {sG}, 144
    s_add_u32 s59, s59, s35
    v_mul_u32_u24 v10, 1152, v12
    v_lshl_add_u32 v10, v14, 3, v10""")

def a_frags(a, base, colbytes_sgpr, extra):
    if extra: a(f"v_and_b32 v12, 8, v11\nv_add_u32 v12, 128, v12")
    else: a(f"v_add_u32 v12, {colbytes_sgpr}, v11")
    a(f"""v_add_u32 v13, v12, v2
    v_add_u32 v14, {8*5184}, v13
    v_add_u32 v15, v12, v4""")
    for s in range(18):
        b = base + 4 * s
        if s < 8: r, off, d2 = 13, s * 5184, 1152
        elif s < 16: r, off, d2 = 14, (s - 8) * 5184, 1152
        else: r, off, d2 = 15, (s - 16) * 41472, 5184
        a(f"ds_read_b64_tr_b16 {vr(b,2)}, v{r} offset:{off}\nds_read_b64_tr_b16 {vr(b+2,2)}, v{r} offset:{off+d2}")
        if s % 4 == 3: a("s_waitcnt lgkmcnt(6)")

def o_gate(a, tag, n, g0, g1, hi, st=None):
    regs = [vOST + 4 * gg + i for gg in range(g0, g1) for i in range(4)] + ([vOST + 32 + i for i in range(4)] if hi else [])
    a(f"s_mov_b32 s56, 0\ns_waitcnt vmcnt({n})\nL_og{tag}:")
    a(f"v_max3_u32 v12, v{regs[0]}, v{regs[1]}, v{regs[2]}")
    rest = regs[3:]
    while len(rest) >= 2:
        a(f"v_max3_u32 v12, v{rest[0]}, v{rest[1]}, v12"); rest = rest[2:]
    if rest: a(f"v_max_u32 v12, v{rest[0]}, v12")
    a(f"""v_cmp_eq_u32 vcc, -1, v12
    s_cbranch_vccz L_ogok{tag}
    s_add_u32 s56, s56, 1
    s_bitcmp1_b32 s56, {SPIN_BITS}
    s_cbranch_scc1 L_ogok{tag}""")
    o_loads(a, g0, g1, hi)
    a(f"s_waitcnt vmcnt(0)\ns_branch L_og{tag}\nL_ogok{tag}:")
    for gg in range(g0, g1): a(f"ds_write_b128 v6, {vr(vOST+4*gg,4)} offset:{gg*4096}")
    if hi: a(f"ds_write_b128 v7, {vr(vOST+32,4)}")
    a("s_waitcnt lgkmcnt(0)\ns_barrier")
    if st: stamp(a, st)

def out_gemm(a, tag, extra):
    DB = 4
    def rd(s):
        if s == 0: o_gate(a, tag + "0", 6, 0, 3, False, 11)
        if s == 6: o_gate(a, tag + "1", 3, 3, 6, False)
        if s == 12: o_gate(a, tag + "2", 0, 6, 8, True)
        b = vBF + 8 * (s % DB)
        off = s * 2048 if s < 16 else 32768 + (s - 16) * 2048
        a(f"ds_read_b128 {vr(b,4)}, v8 offset:{off}\nds_read_b128 {vr(b+4,4)}, v8 offset:{off+256}")
    for s in range(DB): rd(s)
    for s in range(18):
        a(f"s_waitcnt lgkmcnt({2*min(17-s, DB-1)})")
        b = vBF + 8 * (s % DB)
        for j in range(2):
            a(f"v_mfma_f32_16x16x32_bf16 {vr(16+4*j,4)}, {vr(vAF+4*s,4)}, {vr(b+4*j,4)}, {'0' if s == 0 else vr(16+4*j,4)}")
        if extra is not None:
            a(f"v_mfma_f32_16x16x32_bf16 v[24:27], {vr(vAF+72+4*s,4)}, {vr(b+4*extra,4)}, {'0' if s == 0 else 'v[24:27]'}")
        if s + DB < 18: rd(s + DB)
    a(f"""s_lshl_b32 s35, {sHH}, 5
    s_add_u32 s34, s59, s35
    s_add_u32 s35, s34, {16*1152}
    s_add_u32 s33, s59, {128 + (extra or 0)*16*1152}
    s_nop 2
    v_cvt_pk_bf16_f32 v32, v16, v17
    v_cvt_pk_bf16_f32 v33, v18, v19
    v_cvt_pk_bf16_f32 v34, v20, v21
    v_cvt_pk_bf16_f32 v35, v22, v23
    buffer_store_dwordx2 v[32:33], v10, {SOUT}, s34 offen
    buffer_store_dwordx2 v[34:35], v10, {SOUT}, s35 offen""")
    if extra is not None:
        a(f"""v_cvt_pk_bf16_f32 v36, v24, v25
        v_cvt_pk_bf16_f32 v37, v26, v27
        s_mov_b32 exec_hi, 0
        buffer_store_dwordx2 v[36:37], v10, {SOUT}, s33 offen
        s_mov_b32 exec_hi, -1""")

def slow_path(a):
    a(f"""L_slow:
    v_mov_b32 v204, v{dQH}
    v_mov_b32 v205, 0
    s_mov_b32 exec_lo, 0
    v_mov_b32 v204, 0
    s_mov_b32 exec_lo, -1
    v_mov_b32 v213, 0
    v_mov_b32 v206, 0x7ffffff0
    v_cmp_gt_u32 vcc, 32, v{vLANE}
    v_and_b32 v215, 31, v{vLANE}
    v_lshrrev_b32 v214, 5, v{vLANE}
    v_cndmask_b32 v207, v206, v{vL16}, vcc
    v_mul_u32_u24 v214, {VREC//4}, v214
    v_cmp_gt_u32 vcc, 19, v215
    v_lshl_add_u32 v214, v215, 4, v214
    v_mov_b32 v216, 0xff7fffff
    v_cndmask_b32 v214, v206, v214, vcc
    s_mov_b32 s61, 0""")
    for i in range(16): a(f"v_mov_b32 v{dOA+i}, 0")
    a(f"""L_slpass:
    s_mov_b32 s60, 0
    L_sltile:
    s_lshr_b32 s62, s60, 3
    s_mul_i32 s62, s62, {BLK}
    s_and_b32 s63, s60, 7
    s_lshl_b32 s33, s63, 10
    s_add_u32 s33, s33, s62
    buffer_load_dwordx4 v[208:211], v{vL16}, {SWS}, s33 offen {SC}
    s_and_b32 s33, s63, 1
    s_lshl_b32 s33, s33, 9
    s_lshr_b32 s32, s63, 1
    s_lshl_b32 s32, s32, 2
    s_add_u32 s33, s33, s32
    s_add_u32 s33, s33, s62
    s_add_u32 s33, s33, 8192
    buffer_load_dword v212, v207, {SWS}, s33 offen {SC}
    s_mul_i32 s33, s63, {VREC}
    s_add_u32 s33, s33, s62
    s_add_u32 s33, s33, 9216
    buffer_load_dwordx4 v[220:223], v214, {SWS}, s33 offen {SC}
    buffer_load_dwordx4 v[224:227], v214, {SWS}, s33 offen offset:{VREC//2} {SC}
    s_waitcnt vmcnt(0)
    v_mfma_f32_32x32x8_bf16 v[48:63], v[212:213], v[204:205], 0
    v_mfma_f32_32x32x16_bf16 v[48:63], v[208:211], {vr(dQA,4)}, v[48:63]
    s_nop 15
    s_cmp_lg_u32 s61, 0
    s_cbranch_scc1 L_slp2""")
    for i in range(0, 16, 2): a(f"v_max3_f32 v216, v{48+i}, v{49+i}, v216")
    a("s_branch L_slnext\nL_slp2:")
    for i in range(16): a(f"v_sub_f32 v{48+i}, v{48+i}, v216")
    for i in range(16): a(f"v_exp_f32 v{48+i}, v{48+i}")
    a("s_nop 0")
    for i in range(8): a(f"v_cvt_pk_bf16_f32 v{dP+i}, v{48+2*i}, v{49+2*i}")
    a(f"""s_nop 1
    {mf16(dOA, 220, dP)}
    {mf16(dOA, 224, dP+4)}
    s_nop 7
    L_slnext:
    s_add_u32 s60, s60, 1
    s_cmp_lt_u32 s60, 64
    s_cbranch_scc1 L_sltile
    s_cmp_lg_u32 s61, 0
    s_cbranch_scc1 L_sldone
    v_mov_b32 v217, v216
    v_mov_b32 v218, v216
    s_nop 1
    v_permlane32_swap_b32 v217, v218
    s_nop 1
    v_max3_f32 v216, v216, v217, v218
    s_mov_b32 s61, 1
    s_branch L_slpass
    L_sldone:
    s_nop 15""")
    for i in range(11): a(f"v_mov_b32 v{16+i}, v{dOA+i}")
    a(f"""v_mov_b32 v27, v26
    s_nop 1
    v_permlane32_swap_b32 v26, v27
    s_nop 1
    v_rcp_f32 v27, v26
    s_nop 0
    s_branch L_onorm""")

def kvp(a, wait):
    import gen2
    b = Asm(); gen2.kvp(b)
    t = b.text()
    t = t.replace("v_mul_u32_u24 v13, 40, v13", "v_mul_u32_u24 v13, 48, v13")
    t = re.sub(r"(tr_b16 v\[\d+:\d+\], v178 offset:)(\d+)", lambda m: m.group(1) + str(int(m.group(2)) // 160 * 192), t)
    j = t.index("    s_bitcmp1_b32 s5, 0\n    s_cbranch_scc1 L_kvV_f")
    a.l.append(t[:j].rstrip("\n")); wait(); t = t[j:]
    old = t[t.index("    v_and_b32 v12, 3, v179"):t.index("    s_cmp_eq_u32 s3, 0\n    s_cselect_b32 s34, 0, 16")]
    t = t.replace(old, "    v_mov_b32 v12, v179\n")
    a.l.append(t.rstrip("\n"))

def gen():
    G.BLK = BLK
    a = Asm()
    G.kernel_head(a, NAME + "_kernel")
    prologue(a)
    a(f"s_cmp_lt_u32 {sW}, 2\ns_cbranch_scc1 L_kvw")
    front_issue_q(a)
    a("s_branch L_q0")
    touch(a)
    a("L_kvw:")
    front_issue_kv(a)
    setup_all(a)
    kvp(a, lambda: (a(f"s_waitcnt vmcnt({6 + 2*OPT.get('tlb', 1)})\ns_barrier"), stamp(a, 1)))
    a("L_q0:")
    stamp(a, 6, front=True)
    TAGADD = f"""v_mov_b32 v12, 0x{TAGC >> 32:x}
    v_add_co_u32 v{vTAG}, vcc, 0x{TAGC & 0xffffffff:x}, v{vTAG}
    s_nop 1
    v_addc_co_u32 v{vTAG+1}, vcc, v12, v{vTAG+1}, vcc
"""
    a(f"""s_cmp_lt_u32 {sW}, 2
    s_cselect_b64 s[54:55], -1, 0""")
    def gate(n):
        def f():
            a(f"s_waitcnt vmcnt({n})\ns_barrier"); (stamp(a, 10) if not gate.done else stamp(a, 11 + gate.done, front="g")); gate.done += 1
        return f
    gate.done = 0
    def gate3():
        a(f"s_waitcnt vmcnt(0)\ns_cmp_lt_u32 {sW}, 2\ns_cbranch_scc1 L_nowt")
        write_wq_tail(a)
        a("s_waitcnt lgkmcnt(0)\nL_nowt:\ns_barrier")
        stamp(a, 2)
        poll_issue(a)
    def flag():
        a(f"""s_cmp_ge_u32 {sW}, 2
        s_cbranch_scc1 L_noflag
        s_and_b32 s34, s2, 7
        s_lshl_b32 s34, s34, 10
        s_lshr_b32 s35, s2, 3
        s_lshl_b32 s35, s35, 5
        s_add_u32 s34, s34, s35
        s_lshl_b32 s35, {sW}, 3
        s_add_u32 s34, s34, s35
        s_add_u32 s34, s34, {WS_FLAG}
        s_waitcnt vmcnt(0)
        {TAGADD}
        v_mov_b32 v12, 0
        s_mov_b64 exec, 1
        buffer_store_dwordx2 {vr(vTAG,2)}, v12, {SWS}, s34 offen {SC}
        s_mov_b64 exec, -1
        s_setprio 0
        L_noflag:""")
        stamp(a, 11, front=True)
    after = {}
    nd = [0]
    def duty(txt):
        def f():
            nd[0] += 1
            a(f"s_mov_b64 vcc, s[54:55]\ns_cbranch_vccnz L_fd{nd[0]}\n{txt}\nL_fd{nd[0]}:")
        return f
    late = [t for st in (2, 3) for t in stage_load_list(st)]
    slots = [0, 0, 1, 1, 2, 3, 4, 5, 6, 7, 8, 9]
    grp = {}
    for t, sl in zip(late, slots): grp.setdefault(sl, []).append(t)
    for sl, ts in grp.items(): after[sl] = duty("\n".join(ts))
    def both(f, g_): return lambda: (f(), g_())
    fs = OPT.get("flagstep", 3)
    after[fs] = both(flag, after[fs])
    after[14] = duty(TAGADD)
    def lastgate():
        a("s_waitcnt vmcnt(0)\ns_barrier"); stamp(a, 2); poll_issue(a)
    gates = {9: gate(6), 18: gate(6), 27: lastgate}
    if OPT.get("twob", 1): gates[0] = gate(7)
    else: gate.done = 1
    proj(a, q_reads(a), gates, after)
    stamp(a, 11, front="g")
    a(f"s_cmp_ge_u32 {sW}, 2\ns_cbranch_scc1 L_q1")
    poll_wait(a, "a")
    kv_dma(a, 0, 19)
    a("L_q1:\ns_nop 7\ns_nop 1")
    q_finish(a)
    stamp(a, 3)
    a("s_barrier")
    q_write(a)
    a("s_waitcnt vmcnt(0) lgkmcnt(0)\ns_barrier")
    stamp(a, 4); cstamp(a, 8)
    attn_pre(a)
    a(f"s_cmp_lt_u32 {sW}, 2\ns_cbranch_scc1 L_pollok_b")
    poll_wait(a, "b")
    a(f"""s_cmp_lt_u32 {sW}, 2
    s_cselect_b64 vcc, -1, 0
    s_nop 13
    s_waitcnt lgkmcnt(4)
    {mf16(dS[0], dKL[0], dQA)}
    {mf16(dS[0]+16, dKL[0], dQB)}
    s_nop 7
    s_nop 3""")
    attention(a)
    stamp(a, 5); cstamp(a, 9)
    o_combine(a)
    stamp(a, 12)
    o_store(a)
    stamp(a, 13)
    a(f"""s_cmp_lg_u32 s2, 0
    s_cbranch_scc1 L_noep
    s_cmp_lg_u32 {sW}, 0
    s_cbranch_scc1 L_noep
    v_mov_b32 v12, {WS_EPOCH}
    s_mov_b64 exec, 1
    buffer_store_dwordx2 {vr(vTAG,2)}, v12, {SWS}, 0 offen {SC}
    s_mov_b64 exec, -1
    s_waitcnt vmcnt(0)
    L_noep:""")
    tail_addr(a)
    a("s_barrier")
    stamp(a, 3, True)
    a(f"s_lshl_b32 s58, {sHH}, 5")
    a_frags(a, vAF, "s58", False)
    stamp(a, 6)
    a(f"""s_add_u32 s34, {sW}, 2
    s_bitcmp1_b32 s34, 2
    s_cbranch_scc1 L_gplain""")
    o_loads(a, 0, 8, True)
    a_frags(a, vAF + 72, None, True)
    a(f"s_waitcnt lgkmcnt(0)\ns_bitcmp1_b32 {sW}, 0\ns_cbranch_scc1 L_gx1")
    out_gemm(a, "a", 0)
    a("s_branch L_end_f\nL_gx1:")
    out_gemm(a, "b", 1)
    a("s_branch L_end_f\nL_gplain:")
    o_loads(a, 0, 8, True)
    a("s_waitcnt lgkmcnt(0)")
    out_gemm(a, "c", None)
    G.finish(a, "f", 0, 14)
    a("L_codeend:")
    a.l.append(".set CODE_END, L_codeend")
    slow_path(a)
    hdr = G.HEADER + f"; @launch grid=(256,1,1) block=(512,1,1) lds={LDS_TOTAL}\n"
    return (hdr + '.amdgcn_target "amdgcn-amd-amdhsa--gfx950"\n.text\n' + a.text() + '.section .rodata,"a"\n' + G.descriptor(NAME + "_kernel"))

if __name__ == "__main__":
    if "--stamps" in sys.argv:
        G.STAMPS = True; sys.argv.remove("--stamps")
    for x in [x for x in sys.argv if "=" in x]:
        k, v = x.split("="); OPT[k] = int(v); sys.argv.remove(x)
    out = sys.argv[1] if len(sys.argv) > 1 else f"cdna_kernels/{NAME}.s"
    open(out, "w").write(gen())
    print("wrote", out)
```
